```python
import torch

def _softmax(x, axis=-1):
    return torch.softmax(x, dim=axis)
def _gelu(x):
    return torch.nn.functional.gelu(x, approximate="tanh")
def _silu(x):
    return torch.nn.functional.silu(x)
def _sigmoid(x):
    return torch.sigmoid(x)
def _layernorm(x, axis=-1, eps=1e-5):
    m = x.mean(dim=axis, keepdim=True)
    v = x.var(dim=axis, keepdim=True, unbiased=False)
    return (x - m) / torch.sqrt(v + eps)
def _scatter_add(tgt, idx, src, axis=0):
    return tgt.clone().index_add_(axis, idx, src)
def _segment_sum(src, seg, n):
    out = torch.zeros((n,) + src.shape[1:], dtype=src.dtype)
    return out.index_add_(0, seg, src)
def _pad(x, pw):
    flat = tuple(v for pair in reversed(pw) for v in pair)
    return torch.nn.functional.pad(x, flat)

kernel_name = 'parallel_sum__sliding_block_cached__glu_gated_swiglu__decode'

def setup_inputs():

    _w = (lambda a: (lambda t: t.to(torch.bfloat16) if t.is_floating_point() else t)(torch.as_tensor(a)))
    def _A_setup():
        B, Sq, D = 1, 1, 512
        Hq, Hkv, Sk, Dh = 32, 8, 65536, 128
        assert Hq % Hkv == 0, (Hq, Hkv)
        return {
            "x": _w((lambda *s: torch.randn(*s, dtype=torch.bfloat16) * 0.05)(B, Sq, D)),
            "k_cache": _w((lambda *s: torch.randn(*s, dtype=torch.bfloat16) * 1.6)(B, Hkv, Sk, Dh)),
            "v_cache": _w((lambda *s: torch.randn(*s, dtype=torch.bfloat16) * 0.8)(B, Hkv, Sk, Dh)),
            "wq": _w((lambda *s: torch.randn(*s, dtype=torch.bfloat16) * 1.6)(D, Hq * Dh) * (D ** -0.5)),
            "wo": _w((lambda *s: torch.randn(*s, dtype=torch.bfloat16) * 0.8)(Hq * Dh, D) * ((Hq * Dh) ** -0.5)),
        }
    _A_in = _A_setup()

    def _B_setup():
        B, S, D, F = 1, 1, 512, 1792
        return {
            "x": _w((lambda *s: torch.randn(*s, dtype=torch.bfloat16) * 0.05)(B, S, D)),
            "w1": _w((lambda *s: torch.randn(*s, dtype=torch.bfloat16) * 0.4)(D, F) * (2.0 / D) ** 0.5),
            "w3": _w((lambda *s: torch.randn(*s, dtype=torch.bfloat16) * 0.4)(D, F) * (2.0 / D) ** 0.5),
            "w2": _w((lambda *s: torch.randn(*s, dtype=torch.bfloat16) * 0.4)(F, D) * (2.0 / F) ** 0.5),
        }
    _B_in = _B_setup()

    return {
        "A_x": _A_in["x"],
        "A_k_cache": _A_in["k_cache"],
        "A_v_cache": _A_in["v_cache"],
        "A_wq": _A_in["wq"],
        "A_wo": _A_in["wo"],
        "B_x": _B_in["x"],
        "B_w1": _B_in["w1"],
        "B_w3": _B_in["w3"],
        "B_w2": _B_in["w2"],
    }

def reference(A_x, A_k_cache, A_v_cache, A_wq, A_wo, B_x, B_w1, B_w3, B_w2):
    def _A_ref(x, k_cache, v_cache, wq, wo):
        B, Sq, D = x.shape
        Hq, Dh = 32, 128
        Hkv, Sk = k_cache.shape[1], k_cache.shape[2]
        W = min(4096, max(256, Sk // 4))
        rep = Hq // Hkv
        q = (lambda x, *d: x.permute(*d))((x @ wq).reshape(B, Sq, Hq, Dh), 0, 2, 1, 3)
        k = (lambda x, n, axis: torch.repeat_interleave(x, n, dim=axis))(k_cache[:, :, Sk - W:, :], rep, axis=1)
        v = (lambda x, n, axis: torch.repeat_interleave(x, n, dim=axis))(v_cache[:, :, Sk - W:, :], rep, axis=1)
        scores = torch.einsum("bhqd,bhkd->bhqk", q, k) * (Dh ** -0.5)
        p = _softmax(scores, axis=-1)
        o = torch.einsum("bhqk,bhkd->bhqd", p, v)
        return (lambda x, *d: x.permute(*d))(o, 0, 2, 1, 3).reshape(B, Sq, Hq * Dh) @ wo

    def _B_ref(x, w1, w3, w2):
        gate = torch.einsum("bsd,df->bsf", x, w1)
        up = torch.einsum("bsd,df->bsf", x, w3)
        h = _silu(gate) * up
        out = torch.einsum("bsf,fd->bsd", h, w2)
        return out

    x = A_x
    xn = _layernorm(x, axis=-1)
    return x + _A_ref(xn, A_k_cache, A_v_cache, A_wq, A_wo) + _B_ref(xn, B_w1, B_w3, B_w2)
```

```python
import sys

NAME = "parallel_sum__sliding_block_cached__glu_gated_swiglu__decode"

class G:
    def __init__(self, stamps=False, opts=None):
        self.L = []
        self.stamps = stamps
        self.o = opts or {}
        self.nlabel = 0
    def e(self, s):
        self.L.append("    " + s)
    def lab(self, s):
        self.L.append(s + ":")
    def c(self, s):
        self.L.append("    ; " + s)
    def newlabel(self, p):
        self.nlabel += 1
        return "L_%s_%d" % (p, self.nlabel)
    def nop(self, n):
        while n > 0:
            k = min(n, 16)
            self.e("s_nop %d" % (k - 1))
            n -= k
    def stamp(self, i):
        if self.stamps:
            self.e("s_memrealtime s[%d:%d]" % (40 + 2 * i, 41 + 2 * i))
            self.e("s_waitcnt lgkmcnt(0)")

WS_QP = 0x0
WS_GP = 0x10000
WS_S2 = 0x100000
WS_S3 = 0x200000
S3_STRIDE = 4352
WS_STAMP = 0x800000

LDS_V = 0
LDS_XN = 32768
LDS_R1 = 33792
LDS_R1M = 35840
LDS_QB = 37888
LDS_MX = 38912
LDS_P = 39040
P_STRIDE = 272
LDS_H = 40128
LDS_R3 = 40192
LDS_TOTAL = LDS_R3 + 16384

S_X, S_K, S_V, S_WQ, S_WO, S_BX, S_W1, S_W3 = 4, 6, 8, 10, 12, 14, 16, 18
S_W2, S_OUT, S_DBG, S_WS = 20, 22, 24, 26
S_G, S_C, S_W = 28, 29, 30
S_T0, S_T1, S_T2, S_T3 = 31, 32, 33, 34
S_CNT = 35
S_M0SAVE = 36
S_A = 72
S_B = 74
S_C2 = 76
S_D = 78
S_E = 80
S_F = 82
S_MASK = 84
S_MASK2 = 86
S_U0, S_U1, S_U2, S_U3 = 88, 89, 90, 91
S_HI = 92
S_L2E = 93
S_SCALE = 94
S_MLP = 95

SPIN = 1 << 20

def sp(r): return "s[%d:%d]" % (r, r + 1)
def vr(r, n): return "v[%d:%d]" % (r, r + n - 1)

def wave_reduce(g, op, v, n=64):
    steps = ["row_shr:1 row_mask:0xf", "row_shr:2 row_mask:0xf", "row_shr:4 row_mask:0xf", "row_shr:8 row_mask:0xf", "row_bcast:15 row_mask:0xa"]
    if n == 64:
        steps.append("row_bcast:31 row_mask:0xc")
    for s in steps:
        for r in v:
            g.e("v_%s_dpp v%d, v%d, v%d %s bank_mask:0xf" % (op, r, r, r, s))
        if len(v) < 3:
            g.nop(3 - len(v))

def gemv_unit(g, w0, xa, xb, xah, xbh, acc):
    for j in range(4):
        g.e("v_dot2_f32_bf16 v%d, v%d, v%d, 0" % (acc + 2 * j, w0 + j, xa))
        g.e("v_dot2_f32_bf16 v%d, v%d, v%d, 0" % (acc + 2 * j + 1, w0 + j, xah))
    for j in range(4):
        g.e("v_dot2_f32_bf16 v%d, v%d, v%d, v%d" % (acc + 2 * j, w0 + 4 + j, xb, acc + 2 * j))
        g.e("v_dot2_f32_bf16 v%d, v%d, v%d, v%d" % (acc + 2 * j + 1, w0 + 4 + j, xbh, acc + 2 * j + 1))

def reduce_scatter8(g, acc, dst):
    g.nop(4)
    for i in range(4):
        g.e("v_permlane32_swap_b32 v%d, v%d" % (acc + i, acc + 4 + i))
    g.nop(1)
    for i in range(4):
        g.e("v_add_f32 v%d, v%d, v%d" % (acc + i, acc + i, acc + 4 + i))
    g.nop(2)
    for i in range(2):
        g.e("v_permlane16_swap_b32 v%d, v%d" % (acc + i, acc + 2 + i))
    g.nop(1)
    for i in range(2):
        g.e("v_add_f32 v%d, v%d, v%d" % (acc + i, acc + i, acc + 2 + i))
    g.nop(2)
    g.e("v_add_f32_dpp v%d, v%d, v%d row_ror:8 row_mask:0xf bank_mask:0x3" % (dst, acc, acc))
    g.e("v_add_f32_dpp v%d, v%d, v%d row_ror:8 row_mask:0xf bank_mask:0xc" % (dst, acc + 1, acc + 1))

def bf16r(g, dst, src):
    g.e("v_cvt_pk_bf16_f32 v%d, v%d, v%d" % (dst, src, src))
    g.e("v_lshlrev_b32 v%d, 16, v%d" % (dst, dst))

def build(stamps=False, opts=None):
    g = G(stamps, opts)
    o = g.o
    K = NAME + "_kernel"
    hdr = open("cdna_kernels/%s.s.ref" % NAME).read().split("\n")
    top = []
    for line in hdr:
        if line.startswith("; Override") or line.startswith("; grid=") or line.startswith("; @launch"):
            continue
        if line.startswith(";"):
            top.append(line)
        else:
            break
    out = top + [
        "; Single persistent launch: 256 workgroups x (8 worker waves + 1 sync wave). Generated by dev/gen.py (hand-written generator).",
        "; @launch grid=(256,1,1) block=(576,1,1) lds=%d" % LDS_TOTAL,
        '.amdgcn_target "amdgcn-amd-amdhsa--gfx950"',
        ".text",
        ".globl %s" % K,
        ".p2align 8",
        ".type %s,@function" % K,
        K + ":",
    ]
    e = g.e
    e("s_cmp_ge_u32 s2, 256")
    e("s_cbranch_scc1 L_end")
    e("s_load_dwordx16 s[4:19], s[0:1], 0")
    e("s_load_dwordx8 s[20:27], s[0:1], 64")
    g.stamp(0)
    e("v_and_b32 v1, 63, v0")
    e("v_lshrrev_b32 v2, 6, v0")
    e("s_and_b32 s%d, s2, 7" % S_G)
    e("s_lshr_b32 s%d, s2, 3" % S_C)
    e("v_readfirstlane_b32 s%d, v2" % S_W)
    e("s_mov_b32 s%d, 0xffff0000" % S_HI)
    e("s_mov_b32 s%d, 0x3fb8aa3b" % S_L2E)
    e("s_mov_b32 s%d, 0x3db504f3" % S_SCALE)
    e("s_cmp_lt_u32 s%d, 28" % S_C)
    e("s_cselect_b32 s%d, 1, 0" % S_MLP)
    e("v_lshlrev_b32 v3, 4, v1")
    e("s_cmp_eq_u32 s%d, 8" % S_W)
    e("s_cbranch_scc1 L_sync")

    V_L, V_L16 = 1, 3
    V_WQ, V_ML, V_KO = 4, 5, 6
    V_V0 = 7
    V_T = 11
    V_X = 20
    V_WQD = 24
    V_KD = 32
    V_WOD = 48
    V_MLD = 56
    V_W2D = 64
    V_VT = 68
    V_F = 84
    V_ACC = 92
    V_XA, V_XB, V_XAH, V_XBH = 100, 101, 102, 103
    V_XC, V_XD, V_XCH, V_XDH = 104, 105, 106, 107
    V_QB = 108
    V_D = 112
    V_S = 128
    V_PB = 132
    V_O = 148
    V_LS = 152
    V_ONE = 156
    V_R = 160
    V_A1, V_A2, V_A3, V_A4 = 164, 165, 166, 167
    NV = 168
    t = V_T
    e("v_lshrrev_b32 v%d, 3, v1" % t)
    e("v_and_b32 v%d, 7, v1" % (t + 1))
    e("v_lshlrev_b32 v%d, 4, v%d" % (t + 1, t + 1))
    e("v_lshl_add_u32 v%d, v%d, 13, v%d" % (V_WQ, t, t + 1))
    e("v_mul_u32_u24 v%d, 3584, v%d" % (V_ML, t))
    e("v_add_u32 v%d, v%d, v%d" % (V_ML, V_ML, t + 1))
    e("v_bfe_u32 v%d, v1, 2, 2" % (t + 2))
    e("v_lshlrev_b32 v%d, 8, v%d" % (V_KO, t + 2))
    e("v_lshrrev_b32 v%d, 4, v1" % (t + 3))
    e("v_lshl_add_u32 v%d, v%d, 6, v%d" % (V_KO, t + 3, V_KO))
    e("v_and_b32 v%d, 3, v1" % (t + 4))
    e("v_lshl_add_u32 v%d, v%d, 4, v%d" % (V_KO, t + 4, V_KO))
    e("v_lshrrev_b32 v%d, 5, v1" % (t + 5))
    e("v_lshlrev_b32 v%d, 1, v%d" % (t + 5, t + 5))
    e("v_and_b32 v%d, 15, v1" % (t + 6))
    e("v_xor_b32 v%d, v%d, v%d" % (t + 5, t + 5, t + 6))
    e("v_lshlrev_b32 v%d, 4, v%d" % (t + 5, t + 5))
    e("v_lshl_add_u32 v%d, v%d, 8, v%d" % (V_V0, t + 3, t + 5))
    for i in range(1, 4):
        e("v_xor_b32 v%d, %d, v%d" % (V_V0 + i, 64 * i, V_V0))
    e("s_and_b32 s%d, s%d, 3" % (S_T0, S_C))
    e("s_lshr_b32 s%d, s%d, 2" % (S_T1, S_C))
    e("s_lshl_b32 s%d, s%d, 20" % (S_U0, S_T0))
    e("s_lshl_b32 s%d, s%d, 16" % (S_T2, S_W))
    e("s_add_u32 s%d, s%d, s%d" % (S_U0, S_U0, S_T2))
    e("s_lshl_b32 s%d, s%d, 10" % (S_T2, S_G))
    e("s_add_u32 s%d, s%d, s%d" % (S_U0, S_U0, S_T2))
    e("s_lshl_b32 s%d, s%d, 7" % (S_T2, S_T1))
    e("s_add_u32 s%d, s%d, s%d" % (S_U0, S_U0, S_T2))
    e("s_lshl_b32 s%d, s%d, 24" % (S_U1, S_G))
    e("s_lshl_b32 s%d, s%d, 15" % (S_T2, S_C))
    e("s_add_u32 s%d, s%d, s%d" % (S_U1, S_U1, S_T2))
    e("s_lshl_b32 s%d, s%d, 12" % (S_T2, S_W))
    e("s_add_u32 s%d, s%d, s%d" % (S_U1, S_U1, S_T2))
    e("s_add_u32 s%d, s%d, 0xF00000" % (S_U1, S_U1))
    e("s_mov_b32 m0, s%d" % S_T2)
    e("s_waitcnt lgkmcnt(0)")
    g.stamp(1)
    e("global_load_dwordx4 %s, v%d, %s" % (vr(V_X, 4), V_L16, sp(S_X)))
    e("s_add_u32 s%d, s%d, s%d" % (S_A, S_WQ, S_U0))
    e("s_addc_u32 s%d, s%d, 0" % (S_A + 1, S_WQ + 1))
    e("s_add_u32 s%d, s%d, 0x80000" % (S_B, S_A))
    e("s_addc_u32 s%d, s%d, 0" % (S_B + 1, S_A + 1))
    e("global_load_dwordx4 %s, v%d, %s nt" % (vr(V_WQD, 4), V_WQ, sp(S_A)))
    e("global_load_dwordx4 %s, v%d, %s nt" % (vr(V_WQD + 4, 4), V_WQ, sp(S_B)))
    e("s_add_u32 s%d, s%d, s%d" % (S_C2, S_V, S_U1))
    e("s_addc_u32 s%d, s%d, 0" % (S_C2 + 1, S_V + 1))
    e("s_add_u32 s%d, s%d, s%d" % (S_D, S_K, S_U1))
    e("s_addc_u32 s%d, s%d, 0" % (S_D + 1, S_K + 1))
    e("s_barrier")
    for i in range(4):
        e("global_load_lds_dwordx4 v%d, %s offset:%d nt" % (V_V0 + i, sp(S_C2), 1024 * i))
    e("s_waitcnt vmcnt(6)")
    g.stamp(2)
    f = V_F
    for j in range(4):
        e("v_lshlrev_b32 v%d, 16, v%d" % (f + 2 * j, V_X + j))
        e("v_and_b32 v%d, s%d, v%d" % (f + 2 * j + 1, S_HI, V_X + j))
    a = V_ACC
    e("v_add_f32 v%d, v%d, v%d" % (a, f, f + 1))
    e("v_add_f32 v%d, v%d, v%d" % (a + 1, f + 2, f + 3))
    e("v_add_f32 v%d, v%d, v%d" % (a + 2, f + 4, f + 5))
    e("v_add_f32 v%d, v%d, v%d" % (a + 3, f + 6, f + 7))
    e("v_add_f32 v%d, v%d, v%d" % (a, a, a + 1))
    e("v_add_f32 v%d, v%d, v%d" % (a + 2, a + 2, a + 3))
    e("v_add_f32 v%d, v%d, v%d" % (a, a, a + 2))
    g.nop(2)
    wave_reduce(g, "add_f32", [a])
    g.nop(1)
    e("v_readlane_b32 s%d, v%d, 63" % (S_T2, a))
    g.nop(3)
    e("v_mov_b32 v%d, s%d" % (a + 4, S_T2))
    e("v_mul_f32 v%d, 0x3b000000, v%d" % (a + 4, a + 4))
    for j in range(8):
        e("v_sub_f32 v%d, v%d, v%d" % (V_D + j, f + j, a + 4))
    e("v_mul_f32 v%d, v%d, v%d" % (a, V_D, V_D))
    for j in range(1, 8):
        e("v_fmac_f32 v%d, v%d, v%d" % (a, V_D + j, V_D + j))
    g.nop(2)
    wave_reduce(g, "add_f32", [a])
    g.nop(1)
    e("v_readlane_b32 s%d, v%d, 63" % (S_T2, a))
    g.nop(3)
    e("v_mov_b32 v%d, s%d" % (a + 5, S_T2))
    e("v_mul_f32 v%d, 0x3b000000, v%d" % (a + 5, a + 5))
    bf16r(g, a + 4, a + 4)
    bf16r(g, a + 5, a + 5)
    e("v_add_f32 v%d, 0x3727c5ac, v%d" % (a + 5, a + 5))
    bf16r(g, a + 5, a + 5)
    e("v_sqrt_f32 v%d, v%d" % (a + 5, a + 5))
    g.nop(1)
    bf16r(g, a + 5, a + 5)
    e("v_rcp_f32 v%d, v%d" % (a + 6, a + 5))
    for j in range(8):
        e("v_sub_f32 v%d, v%d, v%d" % (f + j, f + j, a + 4))
    for j in range(4):
        e("v_cvt_pk_bf16_f32 v%d, v%d, v%d" % (V_D + j, f + 2 * j, f + 2 * j + 1))
    for j in range(4):
        e("v_lshlrev_b32 v%d, 16, v%d" % (f + 2 * j, V_D + j))
        e("v_and_b32 v%d, s%d, v%d" % (f + 2 * j + 1, S_HI, V_D + j))
    for j in range(8):
        e("v_mul_f32 v%d, v%d, v%d" % (V_D + j, f + j, a + 6))
    for j in range(8):
        e("v_fma_f32 v%d, -v%d, v%d, v%d" % (f + j, V_D + j, a + 5, f + j))
    for j in range(8):
        e("v_fmac_f32 v%d, v%d, v%d" % (V_D + j, f + j, a + 6))
    for j in range(4):
        e("v_cvt_pk_bf16_f32 v%d, v%d, v%d" % (V_X + j, V_D + 2 * j, V_D + 2 * j + 1))
    e("v_add_u32 v%d, %d, v%d" % (t, LDS_XN, V_L16))
    e("ds_write_b128 v%d, %s" % (t, vr(V_X, 4)))
    e("v_lshrrev_b32 v%d, 3, v1" % (t + 1))
    e("v_lshlrev_b32 v%d, 1, v%d" % (t + 1, t + 1))
    e("s_lshl_b32 s%d, s%d, 8" % (S_T2, S_T0))
    e("s_lshl_b32 s%d, s%d, 4" % (S_T3, S_W))
    e("s_add_u32 s%d, s%d, s%d" % (S_T2, S_T2, S_T3))
    e("s_add_u32 s%d, s%d, %d" % (S_T2, S_T2, LDS_XN))
    e("v_add_u32 v%d, s%d, v%d" % (t + 2, S_T2, t + 1))
    e("s_and_b32 s%d, s%d, 3" % (S_U2, S_G))
    e("s_lshl_b32 s%d, s%d, 8" % (S_T2, S_U2))
    e("s_add_u32 s%d, s%d, s%d" % (S_T2, S_T2, S_T3))
    e("s_add_u32 s%d, s%d, %d" % (S_T2, S_T2, LDS_XN))
    e("v_add_u32 v%d, s%d, v%d" % (t + 3, S_T2, t + 1))
    e("s_waitcnt lgkmcnt(0)")
    e("ds_read_u16 v%d, v%d" % (V_XA, t + 2))
    e("ds_read_u16 v%d, v%d offset:128" % (V_XB, t + 2))
    e("ds_read_u16 v%d, v%d" % (V_XC, t + 3))
    e("ds_read_u16 v%d, v%d offset:128" % (V_XD, t + 3))
    e("s_waitcnt lgkmcnt(0)")
    e("v_lshlrev_b32 v%d, 16, v%d" % (V_XAH, V_XA))
    e("v_lshlrev_b32 v%d, 16, v%d" % (V_XBH, V_XB))
    e("v_lshlrev_b32 v%d, 16, v%d" % (V_XCH, V_XC))
    e("v_lshlrev_b32 v%d, 16, v%d" % (V_XDH, V_XD))
    g.stamp(3)
    e("s_waitcnt vmcnt(4)")
    g.stamp(4)
    gemv_unit(g, V_WQD, V_XA, V_XB, V_XAH, V_XBH, V_ACC)
    reduce_scatter8(g, V_ACC, t)
    e("v_and_b32 v%d, 7, v1" % (t + 1))
    e("v_lshlrev_b32 v%d, 5, v%d" % (V_A1, t + 1))
    e("v_bfe_u32 v%d, v1, 3, 3" % (t + 1))
    e("v_lshl_add_u32 v%d, v%d, 2, v%d" % (V_A1, t + 1, V_A1))
    e("s_lshl_b32 s%d, s%d, 8" % (S_T2, S_W))
    e("v_add_u32 v%d, s%d, v%d" % (V_A1, S_T2, V_A1))
    e("ds_write_b32 v%d, v%d offset:%d" % (V_A1, t, LDS_R1))
    e("s_waitcnt lgkmcnt(0)")
    e("s_barrier")
    g.stamp(5)
    for i in range(4):
        e("global_load_dwordx4 %s, v%d, %s offset:%d nt" % (vr(V_KD + 4 * i, 4), V_KO, sp(S_D), 1024 * i))
    e("s_lshl_b32 s%d, s%d, 19" % (S_T2, S_G))
    e("s_lshl_b32 s%d, s%d, 14" % (S_T3, S_C))
    e("s_add_u32 s%d, s%d, s%d" % (S_T2, S_T2, S_T3))
    e("s_lshl_b32 s%d, s%d, 11" % (S_T3, S_W))
    e("s_add_u32 s%d, s%d, s%d" % (S_T2, S_T2, S_T3))
    e("s_add_u32 s%d, s%d, s%d" % (S_A, S_WO, S_T2))
    e("s_addc_u32 s%d, s%d, 0" % (S_A + 1, S_WO + 1))
    e("s_cmp_ge_u32 s%d, 4" % S_G)
    e("s_cselect_b32 s%d, s%d, s%d" % (S_B, S_W3, S_W1))
    e("s_cselect_b32 s%d, s%d, s%d" % (S_B + 1, S_W3 + 1, S_W1 + 1))
    e("s_lshl_b32 s%d, s%d, 7" % (S_T2, S_U2))
    e("s_lshl_b32 s%d, s%d, 3" % (S_T3, S_W))
    e("s_add_u32 s%d, s%d, s%d" % (S_T2, S_T2, S_T3))
    e("s_mul_i32 s%d, s%d, 3584" % (S_T2, S_T2))
    e("s_lshl_b32 s%d, s%d, 7" % (S_T3, S_C))
    e("s_add_u32 s%d, s%d, s%d" % (S_T2, S_T2, S_T3))
    e("s_add_u32 s%d, s%d, s%d" % (S_B, S_B, S_T2))
    e("s_addc_u32 s%d, s%d, 0" % (S_B + 1, S_B + 1))
    e("s_add_u32 s%d, s%d, %d" % (S_E, S_B, 64 * 3584))
    e("s_addc_u32 s%d, s%d, 0" % (S_E + 1, S_B + 1))
    e("s_mul_i32 s%d, s%d, 28" % (S_U3, S_G))
    e("s_add_u32 s%d, s%d, s%d" % (S_U3, S_U3, S_C))
    e("s_lshl_b32 s%d, s%d, 13" % (S_T2, S_U3))
    e("s_lshl_b32 s%d, s%d, 10" % (S_T3, S_W))
    e("s_add_u32 s%d, s%d, s%d" % (S_T2, S_T2, S_T3))
    e("s_add_u32 s%d, s%d, s%d" % (S_F, S_W2, S_T2))
    e("s_addc_u32 s%d, s%d, 0" % (S_F + 1, S_W2 + 1))
    e("v_bfe_u32 v%d, v1, 2, 2" % t)
    e("v_bfe_u32 v%d, v1, 4, 1" % (t + 1))
    e("v_lshlrev_b32 v%d, 2, v%d" % (t + 2, t))
    e("v_lshl_add_u32 v%d, v%d, 1, v%d" % (t + 2, t + 1, t + 2))
    e("v_lshrrev_b32 v%d, 5, v1" % (t + 3))
    e("v_lshl_add_u32 v%d, v%d, 4, v%d" % (t + 3, t + 3, t + 2))
    e("v_lshlrev_b32 v%d, 8, v%d" % (t + 3, t + 3))
    e("v_bfe_u32 v%d, v1, 1, 1" % (t + 4))
    e("s_lshl_b32 s%d, s%d, 1" % (S_T2, S_W))
    e("v_add_u32 v%d, s%d, v%d" % (t + 4, S_T2, t + 4))
    e("v_xor_b32 v%d, v%d, v%d" % (t + 4, t + 4, t + 2))
    e("v_lshl_add_u32 v%d, v%d, 4, v%d" % (t + 3, t + 4, t + 3))
    e("v_and_b32 v%d, 1, v1" % (t + 4))
    e("v_lshl_add_u32 v%d, v%d, 3, v%d" % (V_A2, t + 4, t + 3))
    e("s_waitcnt vmcnt(4)")
    g.stamp(6)
    e("s_barrier")
    for st in range(4):
        for hf in range(2):
            e("ds_read_b64_tr_b16 %s, v%d offset:%d" % (vr(V_VT + 4 * st + 2 * hf, 2), V_A2, st * 8192 + hf * 256))
    lab_nomlp1 = g.newlabel("nomlp")
    e("s_cmp_eq_u32 s%d, 0" % S_MLP)
    e("s_cbranch_scc1 %s" % lab_nomlp1)
    e("global_load_dwordx4 %s, v%d, %s nt" % (vr(V_MLD, 4), V_ML, sp(S_B)))
    e("global_load_dwordx4 %s, v%d, %s nt" % (vr(V_MLD + 4, 4), V_ML, sp(S_E)))
    e("global_load_dwordx4 %s, v%d, %s nt" % (vr(V_W2D, 4), V_L16, sp(S_F)))
    g.lab(lab_nomlp1)
    e("global_load_dwordx4 %s, v%d, %s nt" % (vr(V_WOD, 4), V_L16, sp(S_A)))
    e("global_load_dwordx4 %s, v%d, %s offset:1024 nt" % (vr(V_WOD + 4, 4), V_L16, sp(S_A)))
    for i in range(4):
        e("v_mov_b32 v%d, 0x3f803f80" % (V_ONE + i))
    e("v_and_b32 v%d, 3, v1" % t)
    e("v_lshrrev_b32 v%d, 4, v1" % (t + 1))
    e("v_mul_u32_u24 v%d, %d, v%d" % (t + 2, P_STRIDE, t))
    e("v_lshl_add_u32 v%d, v%d, 4, v%d" % (V_A3, t + 1, t + 2))
    e("v_lshl_add_u32 v%d, v%d, 3, v%d" % (V_A4, t + 1, t + 2))
    e("s_lshl_b32 s%d, s%d, 5" % (S_T2, S_W))
    e("v_add_u32 v%d, s%d, v%d" % (V_A4, S_T2, V_A4))
    e("v_lshlrev_b32 v%d, 5, v%d" % (t + 3, t))
    e("s_lshl_b32 s%d, s%d, 2" % (S_T2, S_W))
    e("v_add_u32 v%d, s%d, v%d" % (t + 4, S_T2, t + 3))
    e("s_barrier")
    e("ds_read_b128 %s, v%d offset:%d" % (vr(V_QB, 4), V_L16, LDS_QB))
    lab_k2 = g.newlabel("k2"); lab_k3 = g.newlabel("k3")
    e("s_cmp_eq_u32 s%d, 0" % S_MLP)
    e("s_cbranch_scc1 %s" % lab_k2)
    e("s_waitcnt vmcnt(5) lgkmcnt(0)")
    e("s_branch %s" % lab_k3)
    g.lab(lab_k2)
    e("s_waitcnt vmcnt(2) lgkmcnt(0)")
    g.lab(lab_k3)
    g.stamp(7)
    for i in range(4):
        e("v_mfma_f32_16x16x32_bf16 %s, %s, %s, 0" % (vr(V_D + 4 * i, 4), vr(V_KD + 4 * i, 4), vr(V_QB, 4)))
    g.nop(8)
    for i in range(4):
        e("v_add_f32_dpp v%d, v%d, v%d row_shl:4 row_mask:0xf bank_mask:0xf bound_ctrl:0" % (V_S + i, V_D + 4 * i + 1, V_D + 4 * i))
    for i in range(4):
        e("v_add_f32_dpp v%d, v%d, v%d row_shl:8 row_mask:0xf bank_mask:0xf bound_ctrl:0" % (V_S + i, V_D + 4 * i + 2, V_S + i))
    for i in range(4):
        e("v_add_f32_dpp v%d, v%d, v%d row_shl:12 row_mask:0xf bank_mask:0xf bound_ctrl:0" % (V_S + i, V_D + 4 * i + 3, V_S + i))
    e("v_cvt_pk_bf16_f32 v%d, v%d, v%d" % (V_D, V_S, V_S + 1))
    e("v_cvt_pk_bf16_f32 v%d, v%d, v%d" % (V_D + 1, V_S + 2, V_S + 3))
    for j in range(2):
        e("v_lshlrev_b32 v%d, 16, v%d" % (V_S + 2 * j, V_D + j))
        e("v_and_b32 v%d, s%d, v%d" % (V_S + 2 * j + 1, S_HI, V_D + j))
    for j in range(4):
        e("v_mul_f32 v%d, s%d, v%d" % (V_S + j, S_SCALE, V_S + j))
    e("v_cvt_pk_bf16_f32 v%d, v%d, v%d" % (V_D, V_S, V_S + 1))
    e("v_cvt_pk_bf16_f32 v%d, v%d, v%d" % (V_D + 1, V_S + 2, V_S + 3))
    for j in range(2):
        e("v_lshlrev_b32 v%d, 16, v%d" % (V_S + 2 * j, V_D + j))
        e("v_and_b32 v%d, s%d, v%d" % (V_S + 2 * j + 1, S_HI, V_D + j))
    e("v_max3_f32 v%d, v%d, v%d, v%d" % (V_D + 2, V_S, V_S + 1, V_S + 2))
    e("v_max_f32 v%d, v%d, v%d" % (V_D + 2, V_D + 2, V_S + 3))
    e("v_mov_b32 v%d, v%d" % (V_D + 3, V_D + 2))
    g.nop(2)
    e("v_permlane16_swap_b32 v%d, v%d" % (V_D + 2, V_D + 3))
    g.nop(1)
    e("v_max_f32 v%d, v%d, v%d" % (V_D + 2, V_D + 2, V_D + 3))
    e("v_mov_b32 v%d, v%d" % (V_D + 3, V_D + 2))
    g.nop(2)
    e("v_permlane32_swap_b32 v%d, v%d" % (V_D + 2, V_D + 3))
    g.nop(1)
    e("v_max_f32 v%d, v%d, v%d" % (V_D + 2, V_D + 2, V_D + 3))
    e("s_mov_b64 exec, 15")
    e("ds_write_b32 v%d, v%d offset:%d" % (t + 4, V_D + 2, LDS_MX))
    e("s_mov_b64 exec, -1")
    e("s_waitcnt lgkmcnt(0)")
    e("s_barrier")
    e("ds_read_b128 %s, v%d offset:%d" % (vr(V_D + 4, 4), t + 3, LDS_MX))
    e("ds_read_b128 %s, v%d offset:%d" % (vr(V_D + 8, 4), t + 3, LDS_MX + 16))
    e("s_waitcnt lgkmcnt(0)")
    e("v_max3_f32 v%d, v%d, v%d, v%d" % (V_D + 2, V_D + 4, V_D + 5, V_D + 6))
    e("v_max3_f32 v%d, v%d, v%d, v%d" % (V_D + 3, V_D + 7, V_D + 8, V_D + 9))
    e("v_max3_f32 v%d, v%d, v%d, v%d" % (V_D + 2, V_D + 2, V_D + 10, V_D + 11))
    e("v_max_f32 v%d, v%d, v%d" % (V_R + 2, V_D + 2, V_D + 3))
    for j in range(4):
        e("v_sub_f32 v%d, v%d, v%d" % (V_S + j, V_S + j, V_R + 2))
    for j in range(4):
        e("v_mul_f32 v%d, s%d, v%d" % (V_S + j, S_L2E, V_S + j))
    for j in range(4):
        e("v_exp_f32 v%d, v%d" % (V_S + j, V_S + j))
    g.nop(1)
    e("v_cvt_pk_bf16_f32 v%d, v%d, v%d" % (V_D, V_S, V_S + 1))
    e("v_cvt_pk_bf16_f32 v%d, v%d, v%d" % (V_D + 1, V_S + 2, V_S + 3))
    e("s_mov_b32 exec_lo, 0x000f000f")
    e("s_mov_b32 exec_hi, 0x000f000f")
    e("ds_write_b64 v%d, %s offset:%d" % (V_A4, vr(V_D, 2), LDS_P))
    e("s_mov_b64 exec, -1")
    e("s_waitcnt lgkmcnt(0)")
    e("s_barrier")
    for st in range(4):
        e("ds_read_b128 %s, v%d offset:%d" % (vr(V_PB + 4 * st, 4), V_A3, LDS_P + 64 * st))
    e("v_and_b32 v%d, 3, v1" % t)
    e("v_lshlrev_b32 v%d, 6, v%d" % (t, t))
    e("v_lshrrev_b32 v%d, 4, v1" % (t + 1))
    e("v_lshl_add_u32 v%d, v%d, 1, v%d" % (t, t + 1, t))
    e("v_bfe_u32 v%d, v1, 2, 1" % (t + 1))
    e("v_add_u32 v%d, v%d, v%d" % (t, t, t + 1))
    e("v_lshlrev_b32 v%d, 9, v%d" % (t, t))
    e("s_lshl_b32 s%d, s%d, 17" % (S_T2, S_G))
    e("s_lshl_b32 s%d, s%d, 12" % (S_T3, S_W))
    e("s_add_u32 s%d, s%d, s%d" % (S_T2, S_T2, S_T3))
    e("s_lshl_b32 s%d, s%d, 4" % (S_T3, S_C))
    e("s_add_u32 s%d, s%d, s%d" % (S_T2, S_T2, S_T3))
    e("s_add_u32 s%d, s%d, %d" % (S_T2, S_T2, WS_S2))
    e("v_add_u32 v%d, s%d, v%d" % (t, S_T2, t))
    e("s_mov_b32 s%d, 0xf0f0f0f0" % S_MASK)
    e("s_mov_b32 s%d, 0xf0f0f0f0" % (S_MASK + 1))
    for st in range(4):
        e("s_waitcnt lgkmcnt(%d)" % (3 - st))
        cin = "0" if st == 0 else vr(V_O, 4)
        cin2 = "0" if st == 0 else vr(V_LS, 4)
        e("v_mfma_f32_16x16x32_bf16 %s, %s, %s, %s" % (vr(V_O, 4), vr(V_VT + 4 * st, 4), vr(V_PB + 4 * st, 4), cin))
        e("v_mfma_f32_16x16x32_bf16 %s, %s, %s, %s" % (vr(V_LS, 4), vr(V_ONE, 4), vr(V_PB + 4 * st, 4), cin2))
    g.nop(9)
    e("v_cndmask_b32 v%d, v%d, v%d, %s" % (V_R, V_O, V_O + 2, sp(S_MASK)))
    e("v_cndmask_b32 v%d, v%d, v%d, %s" % (V_R + 1, V_O + 1, V_O + 3, sp(S_MASK)))
    e("v_mov_b32 v%d, v%d" % (V_R + 3, V_LS))
    for j in range(4):
        e("v_min_u32 v%d, -2, v%d" % (V_R + j, V_R + j))
    e("s_mov_b32 exec_lo, 0x00ff00ff")
    e("s_mov_b32 exec_hi, 0x00ff00ff")
    e("global_store_dwordx4 v%d, %s, %s sc1" % (t, vr(V_R, 4), sp(S_WS)))
    e("s_mov_b64 exec, -1")
    g.stamp(8)
    lab_nomlp2 = g.newlabel("nomlp")
    e("s_cmp_eq_u32 s%d, 0" % S_MLP)
    e("s_cbranch_scc1 %s" % lab_nomlp2)
    e("s_waitcnt vmcnt(4)")
    gemv_unit(g, V_MLD, V_XC, V_XD, V_XCH, V_XDH, V_ACC)
    reduce_scatter8(g, V_ACC, t + 1)
    e("ds_write_b32 v%d, v%d offset:%d" % (V_A1, t + 1, LDS_R1M))
    e("s_waitcnt lgkmcnt(0)")
    g.lab(lab_nomlp2)
    e("s_barrier")
    g.stamp(9)
    e("v_and_b32 v%d, 31, v1" % t)
    e("v_lshlrev_b32 v%d, 4, v%d" % (t, t))
    e("s_lshl_b32 s%d, s%d, 17" % (S_T2, S_G))
    e("s_lshl_b32 s%d, s%d, 12" % (S_T3, S_C))
    e("s_add_u32 s%d, s%d, s%d" % (S_T2, S_T2, S_T3))
    e("s_lshl_b32 s%d, s%d, 9" % (S_T3, S_W))
    e("s_add_u32 s%d, s%d, s%d" % (S_T2, S_T2, S_T3))
    e("s_add_u32 s%d, s%d, %d" % (S_T2, S_T2, WS_S2))
    e("v_add_u32 v%d, s%d, v%d" % (t, S_T2, t))
    e("s_mov_b32 s%d, %d" % (S_CNT, SPIN))
    lp = g.newlabel("s2poll"); dn = g.newlabel("s2done")
    g.lab(lp)
    e("global_load_dwordx4 %s, v%d, %s sc1" % (vr(V_R, 4), t, sp(S_WS)))
    e("s_waitcnt vmcnt(0)")
    e("v_max3_u32 v%d, v%d, v%d, v%d" % (t + 1, V_R, V_R + 1, V_R + 2))
    e("v_max_u32 v%d, v%d, v%d" % (t + 1, t + 1, V_R + 3))
    e("v_cmp_eq_u32 vcc, -1, v%d" % (t + 1))
    e("s_cbranch_vccz %s" % dn)
    e("s_sub_u32 s%d, s%d, 1" % (S_CNT, S_CNT))
    e("s_cmp_lg_u32 s%d, 0" % S_CNT)
    e("s_cbranch_scc1 %s" % lp)
    g.lab(dn)
    g.stamp(10)
    e("v_mov_b32 v%d, v%d" % (t + 1, V_R + 2))
    g.nop(2)
    wave_reduce(g, "max_f32", [t + 1], n=32)
    g.nop(1)
    e("v_readlane_b32 s%d, v%d, 31" % (S_T2, t + 1))
    g.nop(3)
    e("v_subrev_f32 v%d, s%d, v%d" % (t + 1, S_T2, V_R + 2))
    e("v_mul_f32 v%d, s%d, v%d" % (t + 1, S_L2E, t + 1))
    e("v_exp_f32 v%d, v%d" % (t + 1, t + 1))
    g.nop(1)
    e("v_mul_f32 v%d, v%d, v%d" % (V_R, V_R, t + 1))
    e("v_mul_f32 v%d, v%d, v%d" % (V_R + 1, V_R + 1, t + 1))
    e("v_mul_f32 v%d, v%d, v%d" % (V_R + 3, V_R + 3, t + 1))
    g.nop(2)
    wave_reduce(g, "add_f32", [V_R, V_R + 1, V_R + 3], n=32)
    g.nop(1)
    e("v_readlane_b32 s%d, v%d, 31" % (S_T2, V_R))
    e("v_readlane_b32 s%d, v%d, 31" % (S_T3, V_R + 1))
    e("v_readlane_b32 s%d, v%d, 31" % (S_U0, V_R + 3))
    g.nop(3)
    e("v_rcp_f32 v%d, s%d" % (t + 1, S_U0))
    g.nop(1)
    e("v_mul_f32 v%d, s%d, v%d" % (t + 2, S_T2, t + 1))
    e("v_mul_f32 v%d, s%d, v%d" % (t + 3, S_T3, t + 1))
    e("v_cvt_pk_bf16_f32 v%d, v%d, v%d" % (t + 4, t + 2, t + 3))
    e("v_and_b32 v%d, 0xffff, v%d" % (V_XA, t + 4))
    e("v_lshlrev_b32 v%d, 16, v%d" % (V_XAH, t + 4))
    e("v_lshrrev_b32 v%d, 16, v%d" % (V_XB, t + 4))
    e("v_and_b32 v%d, s%d, v%d" % (V_XBH, S_HI, t + 4))
    gemv_unit(g, V_WOD, V_XA, V_XB, V_XAH, V_XBH, V_ACC)
    e("s_barrier")
    g.stamp(11)
    lab_nomlp3 = g.newlabel("nomlp")
    e("s_cmp_eq_u32 s%d, 0" % S_MLP)
    e("s_cbranch_scc1 %s" % lab_nomlp3)
    e("s_lshl_b32 s%d, s%d, 1" % (S_T2, S_W))
    e("v_mov_b32 v%d, s%d" % (t, S_T2))
    e("ds_read_u16 v%d, v%d offset:%d" % (V_XC, t, LDS_H))
    e("s_waitcnt lgkmcnt(0)")
    e("v_lshlrev_b32 v%d, 16, v%d" % (V_XCH, V_XC))
    for j in range(4):
        e("v_dot2_f32_bf16 v%d, v%d, v%d, v%d" % (V_ACC + 2 * j, V_W2D + j, V_XC, V_ACC + 2 * j))
        e("v_dot2_f32_bf16 v%d, v%d, v%d, v%d" % (V_ACC + 2 * j + 1, V_W2D + j, V_XCH, V_ACC + 2 * j + 1))
    g.lab(lab_nomlp3)
    g.nop(4)
    e("v_lshlrev_b32 v%d, 5, v1" % t)
    e("s_lshl_b32 s%d, s%d, 11" % (S_T2, S_W))
    e("v_add_u32 v%d, s%d, v%d" % (t, S_T2, t))
    e("ds_write_b128 v%d, %s offset:%d" % (t, vr(V_ACC, 4), LDS_R3))
    e("ds_write_b128 v%d, %s offset:%d" % (t, vr(V_ACC + 4, 4), LDS_R3 + 16))
    e("s_waitcnt lgkmcnt(0)")
    e("s_barrier")
    e("s_cmp_ge_u32 s%d, 2" % S_W)
    e("s_cbranch_scc1 L_wend")
    e("s_lshl_b32 s%d, s%d, 10" % (S_T2, S_W))
    e("v_add_u32 v%d, s%d, v%d" % (t, S_T2, V_L16))
    for wv in range(8):
        e("ds_read_b128 %s, v%d offset:%d" % (vr(V_D + 4 * (wv % 4) + (0 if wv < 4 else 0), 4) if wv < 4 else vr(V_PB + 4 * (wv - 4), 4), t, LDS_R3 + wv * 2048))
    e("s_lshl_b32 s%d, s%d, 6" % (S_T2, S_W))
    e("v_add_u32 v%d, s%d, v1" % (t + 1, S_T2))
    e("v_mul_u32_u24 v%d, %d, v%d" % (t + 1, S3_STRIDE, t + 1))
    e("s_lshl_b32 s%d, s2, 4" % S_T2)
    e("s_add_u32 s%d, s%d, %d" % (S_T2, S_T2, WS_S3))
    e("v_add_u32 v%d, s%d, v%d" % (t + 1, S_T2, t + 1))
    e("s_waitcnt lgkmcnt(0)")
    for j in range(4):
        e("v_add_f32 v%d, v%d, v%d" % (V_D + j, V_D + j, V_D + 4 + j))
        e("v_add_f32 v%d, v%d, v%d" % (V_D + 8 + j, V_D + 8 + j, V_D + 12 + j))
        e("v_add_f32 v%d, v%d, v%d" % (V_PB + j, V_PB + j, V_PB + 4 + j))
        e("v_add_f32 v%d, v%d, v%d" % (V_PB + 8 + j, V_PB + 8 + j, V_PB + 12 + j))
    for j in range(4):
        e("v_add_f32 v%d, v%d, v%d" % (V_D + j, V_D + j, V_D + 8 + j))
        e("v_add_f32 v%d, v%d, v%d" % (V_PB + j, V_PB + j, V_PB + 8 + j))
    for j in range(4):
        e("v_add_f32 v%d, v%d, v%d" % (V_D + j, V_D + j, V_PB + j))
    for j in range(4):
        e("v_min_u32 v%d, -2, v%d" % (V_D + j, V_D + j))
    e("global_store_dwordx4 v%d, %s, %s sc1" % (t + 1, vr(V_D, 4), sp(S_WS)))
    g.stamp(12)
    g.lab("L_wend")
    e("s_branch L_fin")

    g.lab("L_sync")
    t = 4
    for i in range(4):
        e("v_mov_b32 v%d, -1" % (8 + i))
    e("s_and_b32 s%d, s%d, 3" % (S_T0, S_C))
    e("s_lshr_b32 s%d, s%d, 2" % (S_T1, S_C))
    e("s_lshl_b32 s%d, s%d, 13" % (S_T2, S_G))
    e("s_lshl_b32 s%d, s%d, 11" % (S_T3, S_T0))
    e("s_add_u32 s%d, s%d, s%d" % (S_T2, S_T2, S_T3))
    e("s_lshl_b32 s%d, s%d, 8" % (S_T3, S_T1))
    e("s_add_u32 s%d, s%d, s%d" % (S_T2, S_T2, S_T3))
    e("v_add_u32 v12, s%d, v3" % S_T2)
    e("s_mul_i32 s%d, s%d, 7168" % (S_T2, S_G))
    e("s_lshl_b32 s%d, s%d, 8" % (S_T3, S_C))
    e("s_add_u32 s%d, s%d, s%d" % (S_T2, S_T2, S_T3))
    e("s_add_u32 s%d, s%d, %d" % (S_T2, S_T2, WS_GP))
    e("v_add_u32 v13, s%d, v3" % S_T2)
    e("v_lshlrev_b32 v14, 9, v1")
    e("s_lshl_b32 s%d, s%d, 17" % (S_T2, S_G))
    e("s_lshl_b32 s%d, s%d, 4" % (S_T3, S_C))
    e("s_add_u32 s%d, s%d, s%d" % (S_T2, S_T2, S_T3))
    e("s_add_u32 s%d, s%d, %d" % (S_T2, S_T2, WS_S2))
    e("v_add_u32 v14, s%d, v14" % S_T2)
    e("v_add_u32 v15, 0x8000, v14")
    e("v_add_u32 v16, 0x10000, v14")
    e("v_add_u32 v17, 0x18000, v14")
    e("v_mul_u32_u24 v18, %d, v1" % S3_STRIDE)
    e("s_lshl_b32 s%d, s2, 4" % S_T2)
    e("s_add_u32 s%d, s%d, %d" % (S_T2, S_T2, WS_S3))
    e("v_add_u32 v18, s%d, v18" % S_T2)
    e("v_add_u32 v19, %d, v18" % (64 * S3_STRIDE))
    e("s_lshl_b32 s%d, s%d, 5" % (S_T2, S_G))
    e("s_add_u32 s%d, s%d, s%d" % (S_T2, S_T2, S_C))
    e("v_mov_b32 v20, s%d" % S_T2)
    e("v_mov_b32 v21, 1")
    e("v_lshlrev_b32 v22, 2, v1")
    e("s_waitcnt lgkmcnt(0)")
    g.stamp(1)
    e("s_mov_b64 exec, 0xffff")
    e("global_store_dwordx4 v12, v[8:11], %s sc1" % sp(S_WS))
    sk = g.newlabel("sk")
    e("s_cmp_eq_u32 s%d, 0" % S_MLP)
    e("s_cbranch_scc1 %s" % sk)
    e("global_store_dwordx4 v13, v[8:11], %s sc1" % sp(S_WS))
    g.lab(sk)
    e("s_mov_b64 exec, -1")
    for r in (14, 15, 16, 17, 18, 19):
        e("global_store_dwordx4 v%d, v[8:11], %s sc1" % (r, sp(S_WS)))
    e("v_lshrrev_b32 v23, 4, v1")
    e("s_lshl_b32 s%d, s2, 2" % S_T2)
    e("s_and_b32 s%d, s%d, 511" % (S_T2, S_T2))
    e("v_add_u32 v23, s%d, v23" % S_T2)
    e("v_lshlrev_b32 v23, 1, v23")
    e("global_load_ushort v24, v23, %s" % sp(S_X))
    e("s_barrier")
    e("s_waitcnt vmcnt(0)")
    g.stamp(2)
    e("s_mov_b64 exec, 1")
    e("global_store_byte v20, v21, %s sc1" % sp(S_DBG))
    e("s_mov_b64 exec, -1")
    e("s_barrier")
    g.stamp(3)
    def sum8(base, addr_store):
        e("s_mov_b64 exec, 0xffff")
        for wv in range(8):
            e("ds_read_b128 %s, v3 offset:%d" % (vr(32 + 4 * wv, 4), base + wv * 256))
        e("s_waitcnt lgkmcnt(0)")
        for j in range(4):
            e("v_add_f32 v%d, v%d, v%d" % (32 + j, 32 + j, 36 + j))
            e("v_add_f32 v%d, v%d, v%d" % (40 + j, 40 + j, 44 + j))
            e("v_add_f32 v%d, v%d, v%d" % (48 + j, 48 + j, 52 + j))
            e("v_add_f32 v%d, v%d, v%d" % (56 + j, 56 + j, 60 + j))
        for j in range(4):
            e("v_add_f32 v%d, v%d, v%d" % (32 + j, 32 + j, 40 + j))
            e("v_add_f32 v%d, v%d, v%d" % (48 + j, 48 + j, 56 + j))
        for j in range(4):
            e("v_add_f32 v%d, v%d, v%d" % (32 + j, 32 + j, 48 + j))
        for j in range(4):
            e("v_min_u32 v%d, -2, v%d" % (32 + j, 32 + j))
        e("global_store_dwordx4 v%d, v[32:35], %s sc1" % (addr_store, sp(S_WS)))
        e("s_mov_b64 exec, -1")
    sum8(LDS_R1, 12)
    g.stamp(4)
    e("global_load_dword v25, v22, %s sc1" % sp(S_DBG))
    e("s_mov_b32 s%d, 0x01010101" % S_U0)
    e("v_and_b32 v26, 3, v1")
    e("v_lshlrev_b32 v26, 9, v26")
    e("v_lshrrev_b32 v27, 4, v1")
    e("v_lshl_add_u32 v26, v27, 7, v26")
    e("v_bfe_u32 v27, v1, 2, 2")
    e("v_lshl_add_u32 v26, v27, 5, v26")
    e("s_lshl_b32 s%d, s%d, 13" % (S_T2, S_G))
    e("v_add_u32 v26, s%d, v26" % S_T2)
    e("v_add_u32 v27, 0x1000, v26")
    e("s_barrier")
    e("s_lshl_b32 s%d, s%d, 3" % (S_T2, S_G))
    e("s_lshl_b64 %s, 0xff, s%d" % (sp(S_MASK), S_T2))
    e("s_mov_b32 s%d, %d" % (S_CNT, SPIN))
    lp = g.newlabel("fpoll"); dn = g.newlabel("fdone")
    g.lab(lp)
    e("s_waitcnt vmcnt(0)")
    e("v_cmp_ne_u32 vcc, s%d, v25" % S_U0)
    e("s_mov_b64 %s, vcc" % sp(S_MASK2))
    e("s_and_b64 vcc, vcc, %s" % sp(S_MASK))
    e("s_cbranch_scc0 %s" % dn)
    e("global_load_dword v25, v22, %s sc1" % sp(S_DBG))
    e("s_sub_u32 s%d, s%d, 1" % (S_CNT, S_CNT))
    e("s_cmp_lg_u32 s%d, 0" % S_CNT)
    e("s_cbranch_scc1 %s" % lp)
    g.lab(dn)
    g.stamp(5)
    e("s_mov_b32 s%d, %d" % (S_CNT, SPIN))
    lp = g.newlabel("qpoll"); dn = g.newlabel("qdone")
    g.lab(lp)
    for rq in range(4):
        a_ = 26 if rq < 2 else 27
        off = (rq & 1) * 2048
        e("global_load_dwordx4 %s, v%d, %s offset:%d sc1" % (vr(32 + 8 * rq, 4), a_, sp(S_WS), off))
        e("global_load_dwordx4 %s, v%d, %s offset:%d sc1" % (vr(36 + 8 * rq, 4), a_, sp(S_WS), off + 16))
    e("s_waitcnt vmcnt(0)")
    e("v_max3_u32 v28, v32, v33, v34")
    for k in range(35, 63, 2):
        e("v_max3_u32 v28, v28, v%d, v%d" % (k, k + 1))
    e("v_max_u32 v28, v28, v63")
    e("v_cmp_eq_u32 vcc, -1, v28")
    e("s_cbranch_vccz %s" % dn)
    e("s_sub_u32 s%d, s%d, 1" % (S_CNT, S_CNT))
    e("s_cmp_lg_u32 s%d, 0" % S_CNT)
    e("s_cbranch_scc1 %s" % lp)
    g.lab(dn)
    g.stamp(6)
    for j in range(8):
        e("v_add_f32 v%d, v%d, v%d" % (32 + j, 32 + j, 40 + j))
        e("v_add_f32 v%d, v%d, v%d" % (48 + j, 48 + j, 56 + j))
    for j in range(8):
        e("v_add_f32 v%d, v%d, v%d" % (32 + j, 32 + j, 48 + j))
    for j in range(4):
        e("v_cvt_pk_bf16_f32 v%d, v%d, v%d" % (40 + j, 32 + 2 * j, 33 + 2 * j))
    e("ds_write_b128 v3, v[40:43] offset:%d" % LDS_QB)
    e("s_waitcnt lgkmcnt(0)")
    e("s_barrier")
    g.stamp(7)
    e("s_barrier")
    e("s_barrier")
    e("s_mov_b32 s%d, %d" % (S_CNT, SPIN))
    lp = g.newlabel("apoll"); dn = g.newlabel("adone")
    g.lab(lp)
    e("s_cmp_eq_u64 %s, 0" % sp(S_MASK2))
    e("s_cbranch_scc1 %s" % dn)
    e("global_load_dword v25, v22, %s sc1" % sp(S_DBG))
    e("s_waitcnt vmcnt(0)")
    e("v_cmp_ne_u32 vcc, s%d, v25" % S_U0)
    e("s_mov_b64 %s, vcc" % sp(S_MASK2))
    e("s_sub_u32 s%d, s%d, 1" % (S_CNT, S_CNT))
    e("s_cmp_lg_u32 s%d, 0" % S_CNT)
    e("s_cbranch_scc1 %s" % lp)
    g.lab(dn)
    e("s_barrier")
    g.stamp(8)
    nm = g.newlabel("nomlp")
    e("s_cmp_eq_u32 s%d, 0" % S_MLP)
    e("s_cbranch_scc1 %s" % nm)
    sum8(LDS_R1M, 13)
    g.stamp(9)
    e("s_mul_i32 s%d, s%d, 28" % (S_U3, S_G))
    e("s_add_u32 s%d, s%d, s%d" % (S_U3, S_U3, S_C))
    e("v_bfe_u32 v26, v1, 3, 1")
    e("v_lshlrev_b32 v26, 2, v26")
    e("v_and_b32 v27, 3, v1")
    e("v_add_u32 v26, v26, v27")
    e("v_mul_u32_u24 v26, 7168, v26")
    e("v_bfe_u32 v27, v1, 2, 1")
    e("v_lshl_add_u32 v26, v27, 4, v26")
    e("s_lshl_b32 s%d, s%d, 5" % (S_T2, S_U3))
    e("s_add_u32 s%d, s%d, %d" % (S_T2, S_T2, WS_GP))
    e("v_add_u32 v26, s%d, v26" % S_T2)
    e("s_mov_b64 exec, 0xffff")
    e("s_mov_b32 s%d, %d" % (S_CNT, SPIN))
    lp = g.newlabel("gpoll"); dn = g.newlabel("gdone")
    g.lab(lp)
    e("global_load_dwordx4 v[32:35], v26, %s sc1" % sp(S_WS))
    e("s_waitcnt vmcnt(0)")
    e("v_max3_u32 v28, v32, v33, v34")
    e("v_max_u32 v28, v28, v35")
    e("v_cmp_eq_u32 vcc, -1, v28")
    e("s_cbranch_vccz %s" % dn)
    e("s_sub_u32 s%d, s%d, 1" % (S_CNT, S_CNT))
    e("s_cmp_lg_u32 s%d, 0" % S_CNT)
    e("s_cbranch_scc1 %s" % lp)
    g.lab(dn)
    g.stamp(10)
    for qp in ("[1,0,3,2]", "[2,3,0,1]"):
        for j in range(4):
            e("v_add_f32_dpp v%d, v%d, v%d quad_perm:%s row_mask:0xf bank_mask:0xf" % (32 + j, 32 + j, 32 + j, qp))
    for j in range(4):
        bf16r(g, 32 + j, 32 + j)
    g.nop(2)
    for j in range(4):
        e("v_mov_b32_dpp v%d, v%d row_shl:8 row_mask:0xf bank_mask:0xf bound_ctrl:0" % (36 + j, 32 + j))
    for j in range(4):
        e("v_mul_f32 v%d, s%d, v%d" % (40 + j, S_L2E, 32 + j))
    for j in range(4):
        e("v_exp_f32 v%d, -v%d" % (40 + j, 40 + j))
    g.nop(1)
    for j in range(4):
        e("v_add_f32 v%d, 1.0, v%d" % (40 + j, 40 + j))
    for j in range(4):
        e("v_rcp_f32 v%d, v%d" % (44 + j, 40 + j))
    g.nop(1)
    for j in range(4):
        e("v_mul_f32 v%d, v%d, v%d" % (48 + j, 32 + j, 44 + j))
    for j in range(4):
        e("v_fma_f32 v%d, -v%d, v%d, v%d" % (52 + j, 48 + j, 40 + j, 32 + j))
    for j in range(4):
        e("v_fmac_f32 v%d, v%d, v%d" % (48 + j, 52 + j, 44 + j))
    for j in range(4):
        bf16r(g, 48 + j, 48 + j)
    for j in range(4):
        e("v_mul_f32 v%d, v%d, v%d" % (48 + j, 48 + j, 36 + j))
    e("v_cvt_pk_bf16_f32 v52, v48, v49")
    e("v_cvt_pk_bf16_f32 v53, v50, v51")
    e("v_bfe_u32 v27, v1, 2, 1")
    e("v_lshlrev_b32 v27, 3, v27")
    e("s_mov_b64 exec, 0x11")
    e("ds_write_b64 v27, v[52:53] offset:%d" % LDS_H)
    e("s_waitcnt lgkmcnt(0)")
    e("s_mov_b64 exec, -1")
    g.lab(nm)
    e("s_barrier")
    e("s_barrier")
    g.stamp(11)
    e("s_cmp_ge_u32 s2, 128")
    e("s_cbranch_scc1 L_fin")
    e("s_mul_i32 s%d, s2, %d" % (S_T2, S3_STRIDE))
    e("s_add_u32 s%d, s%d, %d" % (S_T2, S_T2, WS_S3))
    e("v_add_u32 v26, s%d, v3" % S_T2)
    e("s_mov_b32 s%d, %d" % (S_CNT, SPIN))
    lp = g.newlabel("opoll"); dn = g.newlabel("odone")
    g.lab(lp)
    for i in range(4):
        e("global_load_dwordx4 %s, v26, %s offset:%d sc1" % (vr(32 + 4 * i, 4), sp(S_WS), 1024 * i))
    e("s_waitcnt vmcnt(0)")
    e("v_max3_u32 v28, v32, v33, v34")
    for k in range(35, 47, 2):
        e("v_max3_u32 v28, v28, v%d, v%d" % (k, k + 1))
    e("v_max_u32 v28, v28, v47")
    e("v_cmp_eq_u32 vcc, -1, v28")
    e("s_cbranch_vccz %s" % dn)
    e("s_sub_u32 s%d, s%d, 1" % (S_CNT, S_CNT))
    e("s_cmp_lg_u32 s%d, 0" % S_CNT)
    e("s_cbranch_scc1 %s" % lp)
    g.lab(dn)
    g.stamp(12)
    for j in range(4):
        e("v_add_f32 v%d, v%d, v%d" % (32 + j, 32 + j, 36 + j))
        e("v_add_f32 v%d, v%d, v%d" % (40 + j, 40 + j, 44 + j))
    for j in range(4):
        e("v_add_f32 v%d, v%d, v%d" % (32 + j, 32 + j, 40 + j))
    g.nop(2)
    e("v_permlane32_swap_b32 v32, v34")
    e("v_permlane32_swap_b32 v33, v35")
    g.nop(1)
    e("v_add_f32 v32, v32, v34")
    e("v_add_f32 v33, v33, v35")
    g.nop(2)
    e("v_permlane16_swap_b32 v32, v33")
    g.nop(1)
    e("v_add_f32 v32, v32, v33")
    g.nop(2)
    for s in ("row_shr:1", "row_shr:2", "row_shr:4", "row_shr:8"):
        e("v_add_f32_dpp v32, v32, v32 %s row_mask:0xf bank_mask:0xf" % s)
        g.nop(2)
    e("v_lshlrev_b32 v24, 16, v24")
    e("v_add_f32 v32, v32, v24")
    e("v_cvt_pk_bf16_f32 v32, v32, v32")
    e("s_mov_b32 exec_lo, 0x80008000")
    e("s_mov_b32 exec_hi, 0x80008000")
    e("global_store_short v23, v32, %s" % sp(S_OUT))
    e("s_mov_b64 exec, -1")
    g.stamp(13)
    g.lab("L_fin")
    if stamps:
        e("s_mul_i32 s%d, s2, 9" % S_T2)
        e("s_add_u32 s%d, s%d, s%d" % (S_T2, S_T2, S_W))
        e("s_lshl_b32 s%d, s%d, 7" % (S_T2, S_T2))
        e("s_add_u32 s%d, s%d, %d" % (S_T2, S_T2, WS_STAMP))
        e("v_mov_b32 v2, s%d" % S_T2)
        e("s_mov_b64 exec, 1")
        for i in range(16):
            e("v_mov_b32 v4, s%d" % (40 + 2 * i))
            e("v_mov_b32 v5, s%d" % (41 + 2 * i))
            e("global_store_dwordx2 v2, v[4:5], %s offset:%d" % (sp(S_WS), 8 * i))
            e("s_nop 1")
    g.lab("L_end")
    e("s_endpgm")
    tail = [
        '.section .rodata,"a"',
        ".p2align 6",
        ".amdhsa_kernel %s" % K,
        "  .amdhsa_next_free_vgpr %d" % NV,
        "  .amdhsa_next_free_sgpr 102",
        "  .amdhsa_accum_offset %d" % NV,
        "  .amdhsa_group_segment_fixed_size 0",
        "  .amdhsa_kernarg_size 96",
        "  .amdhsa_user_sgpr_count 2",
        "  .amdhsa_user_sgpr_kernarg_segment_ptr 1",
        "  .amdhsa_system_sgpr_workgroup_id_x 1",
        ".end_amdhsa_kernel",
    ]
    pre = []
    if stamps:
        pass
    return "\n".join(out + g.L + tail) + "\n"

if __name__ == "__main__":
    stamps = "--stamps" in sys.argv
    outp = [a for a in sys.argv[1:] if not a.startswith("--")]
    txt = build(stamps)
    open(outp[0], "w").write(txt)
    print("wrote", outp[0], len(txt.split("\n")), "lines")
```

```python
import sys

NAME = "parallel_sum__sliding_block_cached__glu_gated_swiglu__decode"

class G:
    def __init__(self, stamps=False, opts=None):
        self.L = []
        self.stamps = stamps
        self.o = opts or {}
        self.nlabel = 0
    def e(self, s):
        self.L.append("    " + s)
    def lab(self, s):
        self.L.append(s + ":")
    def c(self, s):
        self.L.append("    ; " + s)
    def newlabel(self, p):
        self.nlabel += 1
        return "L_%s_%d" % (p, self.nlabel)
    def nop(self, n):
        while n > 0:
            k = min(n, 16)
            self.e("s_nop %d" % (k - 1))
            n -= k
    def stamp(self, i):
        if self.stamps:
            self.e("s_memrealtime s[%d:%d]" % (40 + 2 * i, 41 + 2 * i))
            self.e("s_waitcnt lgkmcnt(0)")

WS_QP = 0x0
WS_GP = 0x10000
WS_S2 = 0x100000
WS_S3 = 0x200000
S3_STRIDE = 4352
WS_STAMP = 0x800000

LDS_V = 0
LDS_XN = 32768
LDS_R1 = 33792
LDS_R1M = 35840
LDS_QB = 37888
LDS_MX = 38912
LDS_P = 39040
P_STRIDE = 272
LDS_H = 40128
LDS_R3 = 40192
LDS_TOTAL = LDS_R3 + 16384

S_X, S_K, S_V, S_WQ, S_WO, S_BX, S_W1, S_W3 = 4, 6, 8, 10, 12, 14, 16, 18
S_W2, S_OUT, S_DBG, S_WS = 20, 22, 24, 26
S_G, S_C, S_W = 28, 29, 30
S_T0, S_T1, S_T2, S_T3 = 31, 32, 33, 34
S_CNT = 35
S_M0SAVE = 36
S_A = 72
S_B = 74
S_C2 = 76
S_D = 78
S_E = 80
S_F = 82
S_MASK = 84
S_MASK2 = 86
S_U0, S_U1, S_U2, S_U3 = 88, 89, 90, 91
S_HI = 92
S_L2E = 93
S_SCALE = 94
S_MLP = 95

SPIN = 1 << 20

def sp(r): return "s[%d:%d]" % (r, r + 1)
def vr(r, n): return "v[%d:%d]" % (r, r + n - 1)

def wave_reduce(g, op, v, n=64):
    steps = ["row_shr:1 row_mask:0xf", "row_shr:2 row_mask:0xf", "row_shr:4 row_mask:0xf", "row_shr:8 row_mask:0xf", "row_bcast:15 row_mask:0xa"]
    if n == 64:
        steps.append("row_bcast:31 row_mask:0xc")
    for s in steps:
        for r in v:
            g.e("v_%s_dpp v%d, v%d, v%d %s bank_mask:0xf" % (op, r, r, r, s))
        if len(v) < 3:
            g.nop(3 - len(v))

def gemv_unit(g, w0, xa, xb, xah, xbh, acc):
    for j in range(4):
        g.e("v_dot2_f32_bf16 v%d, v%d, v%d, 0" % (acc + 2 * j, w0 + j, xa))
        g.e("v_dot2_f32_bf16 v%d, v%d, v%d, 0" % (acc + 2 * j + 1, w0 + j, xah))
    for j in range(4):
        g.e("v_dot2_f32_bf16 v%d, v%d, v%d, v%d" % (acc + 2 * j, w0 + 4 + j, xb, acc + 2 * j))
        g.e("v_dot2_f32_bf16 v%d, v%d, v%d, v%d" % (acc + 2 * j + 1, w0 + 4 + j, xbh, acc + 2 * j + 1))

def reduce_scatter8(g, acc, dst):
    g.nop(4)
    for i in range(4):
        g.e("v_permlane32_swap_b32 v%d, v%d" % (acc + i, acc + 4 + i))
    g.nop(1)
    for i in range(4):
        g.e("v_add_f32 v%d, v%d, v%d" % (acc + i, acc + i, acc + 4 + i))
    g.nop(2)
    for i in range(2):
        g.e("v_permlane16_swap_b32 v%d, v%d" % (acc + i, acc + 2 + i))
    g.nop(1)
    for i in range(2):
        g.e("v_add_f32 v%d, v%d, v%d" % (acc + i, acc + i, acc + 2 + i))
    g.nop(2)
    g.e("v_add_f32_dpp v%d, v%d, v%d row_ror:8 row_mask:0xf bank_mask:0x3" % (dst, acc, acc))
    g.e("v_add_f32_dpp v%d, v%d, v%d row_ror:8 row_mask:0xf bank_mask:0xc" % (dst, acc + 1, acc + 1))

def bf16r(g, dst, src):
    g.e("v_cvt_pk_bf16_f32 v%d, v%d, v%d" % (dst, src, src))
    g.e("v_lshlrev_b32 v%d, 16, v%d" % (dst, dst))

def build(stamps=False, opts=None):
    g = G(stamps, opts)
    o = g.o
    K = NAME + "_kernel"
    hdr = open("cdna_kernels/%s.s.ref" % NAME).read().split("\n")
    top = []
    for line in hdr:
        if line.startswith("; Override") or line.startswith("; grid=") or line.startswith("; @launch"):
            continue
        if line.startswith(";"):
            top.append(line)
        else:
            break
    out = top + [
        "; Single persistent launch: 256 workgroups x (8 worker waves + 1 sync wave). Generated by dev/gen.py (hand-written generator).",
        "; @launch grid=(256,1,1) block=(576,1,1) lds=%d" % LDS_TOTAL,
        '.amdgcn_target "amdgcn-amd-amdhsa--gfx950"',
        ".text",
        ".globl %s" % K,
        ".p2align 8",
        ".type %s,@function" % K,
        K + ":",
    ]
    e = g.e
    e("s_cmp_ge_u32 s2, 256")
    e("s_cbranch_scc1 L_end")
    e("s_load_dwordx16 s[4:19], s[0:1], 0")
    e("s_load_dwordx8 s[20:27], s[0:1], 64")
    g.stamp(0)
    e("v_and_b32 v1, 63, v0")
    e("v_lshrrev_b32 v2, 6, v0")
    e("s_and_b32 s%d, s2, 7" % S_G)
    e("s_lshr_b32 s%d, s2, 3" % S_C)
    e("v_readfirstlane_b32 s%d, v2" % S_W)
    e("s_mov_b32 s%d, 0xffff0000" % S_HI)
    e("s_mov_b32 s%d, 0x3fb8aa3b" % S_L2E)
    e("s_mov_b32 s%d, 0x3db504f3" % S_SCALE)
    e("s_cmp_lt_u32 s%d, 28" % S_C)
    e("s_cselect_b32 s%d, 1, 0" % S_MLP)
    e("v_lshlrev_b32 v3, 4, v1")
    e("s_cmp_eq_u32 s%d, 8" % S_W)
    e("s_cbranch_scc1 L_sync")

    V_L, V_L16 = 1, 3
    V_WQ, V_ML, V_KO = 4, 5, 6
    V_V0 = 7
    V_T = 11
    V_X = 20
    V_WQD = 24
    V_KD = 32
    V_WOD = 48
    V_MLD = 56
    V_W2D = 64
    V_VT = 68
    V_F = 84
    V_ACC = 92
    V_XA, V_XB, V_XAH, V_XBH = 100, 101, 102, 103
    V_XC, V_XD, V_XCH, V_XDH = 104, 105, 106, 107
    V_QB = 108
    V_D = 112
    V_S = 128
    V_PB = 132
    V_O = 148
    V_LS = 152
    V_ONE = 156
    V_R = 160
    V_A1, V_A2, V_A3, V_A4 = 164, 165, 166, 167
    NV = 168
    t = V_T
    e("v_lshrrev_b32 v%d, 3, v1" % t)
    e("v_and_b32 v%d, 7, v1" % (t + 1))
    e("v_lshlrev_b32 v%d, 4, v%d" % (t + 1, t + 1))
    e("v_lshl_add_u32 v%d, v%d, 13, v%d" % (V_WQ, t, t + 1))
    e("v_mul_u32_u24 v%d, 3584, v%d" % (V_ML, t))
    e("v_add_u32 v%d, v%d, v%d" % (V_ML, V_ML, t + 1))
    e("v_bfe_u32 v%d, v1, 2, 2" % (t + 2))
    e("v_lshlrev_b32 v%d, 8, v%d" % (V_KO, t + 2))
    e("v_lshrrev_b32 v%d, 4, v1" % (t + 3))
    e("v_lshl_add_u32 v%d, v%d, 6, v%d" % (V_KO, t + 3, V_KO))
    e("v_and_b32 v%d, 3, v1" % (t + 4))
    e("v_lshl_add_u32 v%d, v%d, 4, v%d" % (V_KO, t + 4, V_KO))
    e("v_lshrrev_b32 v%d, 5, v1" % (t + 5))
    e("v_lshlrev_b32 v%d, 1, v%d" % (t + 5, t + 5))
    e("v_and_b32 v%d, 15, v1" % (t + 6))
    e("v_xor_b32 v%d, v%d, v%d" % (t + 5, t + 5, t + 6))
    e("v_lshlrev_b32 v%d, 4, v%d" % (t + 5, t + 5))
    e("v_lshl_add_u32 v%d, v%d, 8, v%d" % (V_V0, t + 3, t + 5))
    for i in range(1, 4):
        e("v_xor_b32 v%d, %d, v%d" % (V_V0 + i, 64 * i, V_V0))
    e("s_and_b32 s%d, s%d, 3" % (S_T0, S_C))
    e("s_lshr_b32 s%d, s%d, 2" % (S_T1, S_C))
    e("s_lshl_b32 s%d, s%d, 20" % (S_U0, S_T0))
    e("s_lshl_b32 s%d, s%d, 16" % (S_T2, S_W))
    e("s_add_u32 s%d, s%d, s%d" % (S_U0, S_U0, S_T2))
    e("s_lshl_b32 s%d, s%d, 10" % (S_T2, S_G))
    e("s_add_u32 s%d, s%d, s%d" % (S_U0, S_U0, S_T2))
    e("s_lshl_b32 s%d, s%d, 7" % (S_T2, S_T1))
    e("s_add_u32 s%d, s%d, s%d" % (S_U0, S_U0, S_T2))
    e("s_lshl_b32 s%d, s%d, 24" % (S_U1, S_G))
    e("s_lshl_b32 s%d, s%d, 15" % (S_T2, S_C))
    e("s_add_u32 s%d, s%d, s%d" % (S_U1, S_U1, S_T2))
    e("s_lshl_b32 s%d, s%d, 12" % (S_T2, S_W))
    e("s_add_u32 s%d, s%d, s%d" % (S_U1, S_U1, S_T2))
    e("s_add_u32 s%d, s%d, 0xF00000" % (S_U1, S_U1))
    e("s_mov_b32 m0, s%d" % S_T2)
    e("s_waitcnt lgkmcnt(0)")
    g.stamp(1)
    e("global_load_dwordx4 %s, v%d, %s" % (vr(V_X, 4), V_L16, sp(S_X)))
    e("s_add_u32 s%d, s%d, s%d" % (S_A, S_WQ, S_U0))
    e("s_addc_u32 s%d, s%d, 0" % (S_A + 1, S_WQ + 1))
    e("s_add_u32 s%d, s%d, 0x80000" % (S_B, S_A))
    e("s_addc_u32 s%d, s%d, 0" % (S_B + 1, S_A + 1))
    e("global_load_dwordx4 %s, v%d, %s nt" % (vr(V_WQD, 4), V_WQ, sp(S_A)))
    e("global_load_dwordx4 %s, v%d, %s nt" % (vr(V_WQD + 4, 4), V_WQ, sp(S_B)))
    e("s_add_u32 s%d, s%d, s%d" % (S_C2, S_V, S_U1))
    e("s_addc_u32 s%d, s%d, 0" % (S_C2 + 1, S_V + 1))
    e("s_add_u32 s%d, s%d, s%d" % (S_D, S_K, S_U1))
    e("s_addc_u32 s%d, s%d, 0" % (S_D + 1, S_K + 1))
    e("s_barrier")
    for i in range(4):
        e("global_load_lds_dwordx4 v%d, %s offset:%d nt" % (V_V0 + i, sp(S_C2), 1024 * i))
    e("s_waitcnt vmcnt(6)")
    g.stamp(2)
    f = V_F
    for j in range(4):
        e("v_lshlrev_b32 v%d, 16, v%d" % (f + 2 * j, V_X + j))
        e("v_and_b32 v%d, s%d, v%d" % (f + 2 * j + 1, S_HI, V_X + j))
    a = V_ACC
    e("v_add_f32 v%d, v%d, v%d" % (a, f, f + 1))
    e("v_add_f32 v%d, v%d, v%d" % (a + 1, f + 2, f + 3))
    e("v_add_f32 v%d, v%d, v%d" % (a + 2, f + 4, f + 5))
    e("v_add_f32 v%d, v%d, v%d" % (a + 3, f + 6, f + 7))
    e("v_add_f32 v%d, v%d, v%d" % (a, a, a + 1))
    e("v_add_f32 v%d, v%d, v%d" % (a + 2, a + 2, a + 3))
    e("v_add_f32 v%d, v%d, v%d" % (a, a, a + 2))
    g.nop(2)
    wave_reduce(g, "add_f32", [a])
    g.nop(1)
    e("v_readlane_b32 s%d, v%d, 63" % (S_T2, a))
    g.nop(3)
    e("v_mov_b32 v%d, s%d" % (a + 4, S_T2))
    e("v_mul_f32 v%d, 0x3b000000, v%d" % (a + 4, a + 4))
    for j in range(8):
        e("v_sub_f32 v%d, v%d, v%d" % (V_D + j, f + j, a + 4))
    e("v_mul_f32 v%d, v%d, v%d" % (a, V_D, V_D))
    for j in range(1, 8):
        e("v_fmac_f32 v%d, v%d, v%d" % (a, V_D + j, V_D + j))
    g.nop(2)
    wave_reduce(g, "add_f32", [a])
    g.nop(1)
    e("v_readlane_b32 s%d, v%d, 63" % (S_T2, a))
    g.nop(3)
    e("v_mov_b32 v%d, s%d" % (a + 5, S_T2))
    e("v_mul_f32 v%d, 0x3b000000, v%d" % (a + 5, a + 5))
    bf16r(g, a + 4, a + 4)
    bf16r(g, a + 5, a + 5)
    e("v_add_f32 v%d, 0x3727c5ac, v%d" % (a + 5, a + 5))
    bf16r(g, a + 5, a + 5)
    e("v_sqrt_f32 v%d, v%d" % (a + 5, a + 5))
    g.nop(1)
    bf16r(g, a + 5, a + 5)
    e("v_rcp_f32 v%d, v%d" % (a + 6, a + 5))
    for j in range(8):
        e("v_sub_f32 v%d, v%d, v%d" % (f + j, f + j, a + 4))
    for j in range(4):
        e("v_cvt_pk_bf16_f32 v%d, v%d, v%d" % (V_D + j, f + 2 * j, f + 2 * j + 1))
    for j in range(4):
        e("v_lshlrev_b32 v%d, 16, v%d" % (f + 2 * j, V_D + j))
        e("v_and_b32 v%d, s%d, v%d" % (f + 2 * j + 1, S_HI, V_D + j))
    for j in range(8):
        e("v_mul_f32 v%d, v%d, v%d" % (V_D + j, f + j, a + 6))
    for j in range(8):
        e("v_fma_f32 v%d, -v%d, v%d, v%d" % (f + j, V_D + j, a + 5, f + j))
    for j in range(8):
        e("v_fmac_f32 v%d, v%d, v%d" % (V_D + j, f + j, a + 6))
    for j in range(4):
        e("v_cvt_pk_bf16_f32 v%d, v%d, v%d" % (V_X + j, V_D + 2 * j, V_D + 2 * j + 1))
    e("v_add_u32 v%d, %d, v%d" % (t, LDS_XN, V_L16))
    e("ds_write_b128 v%d, %s" % (t, vr(V_X, 4)))
    e("v_lshrrev_b32 v%d, 3, v1" % (t + 1))
    e("v_lshlrev_b32 v%d, 1, v%d" % (t + 1, t + 1))
    e("s_lshl_b32 s%d, s%d, 8" % (S_T2, S_T0))
    e("s_lshl_b32 s%d, s%d, 4" % (S_T3, S_W))
    e("s_add_u32 s%d, s%d, s%d" % (S_T2, S_T2, S_T3))
    e("s_add_u32 s%d, s%d, %d" % (S_T2, S_T2, LDS_XN))
    e("v_add_u32 v%d, s%d, v%d" % (t + 2, S_T2, t + 1))
    e("s_and_b32 s%d, s%d, 3" % (S_U2, S_G))
    e("s_lshl_b32 s%d, s%d, 8" % (S_T2, S_U2))
    e("s_add_u32 s%d, s%d, s%d" % (S_T2, S_T2, S_T3))
    e("s_add_u32 s%d, s%d, %d" % (S_T2, S_T2, LDS_XN))
    e("v_add_u32 v%d, s%d, v%d" % (t + 3, S_T2, t + 1))
    e("s_waitcnt lgkmcnt(0)")
    e("ds_read_u16 v%d, v%d" % (V_XA, t + 2))
    e("ds_read_u16 v%d, v%d offset:128" % (V_XB, t + 2))
    e("ds_read_u16 v%d, v%d" % (V_XC, t + 3))
    e("ds_read_u16 v%d, v%d offset:128" % (V_XD, t + 3))
    e("s_waitcnt lgkmcnt(0)")
    e("v_lshlrev_b32 v%d, 16, v%d" % (V_XAH, V_XA))
    e("v_lshlrev_b32 v%d, 16, v%d" % (V_XBH, V_XB))
    e("v_lshlrev_b32 v%d, 16, v%d" % (V_XCH, V_XC))
    e("v_lshlrev_b32 v%d, 16, v%d" % (V_XDH, V_XD))
    g.stamp(3)
    e("s_waitcnt vmcnt(4)")
    g.stamp(4)
    gemv_unit(g, V_WQD, V_XA, V_XB, V_XAH, V_XBH, V_ACC)
    reduce_scatter8(g, V_ACC, t)
    e("v_and_b32 v%d, 7, v1" % (t + 1))
    e("v_lshlrev_b32 v%d, 5, v%d" % (V_A1, t + 1))
    e("v_bfe_u32 v%d, v1, 3, 3" % (t + 1))
    e("v_lshl_add_u32 v%d, v%d, 2, v%d" % (V_A1, t + 1, V_A1))
    e("s_lshl_b32 s%d, s%d, 8" % (S_T2, S_W))
    e("v_add_u32 v%d, s%d, v%d" % (V_A1, S_T2, V_A1))
    e("ds_write_b32 v%d, v%d offset:%d" % (V_A1, t, LDS_R1))
    e("s_waitcnt lgkmcnt(0)")
    e("s_barrier")
    g.stamp(5)
    for i in range(4):
        e("global_load_dwordx4 %s, v%d, %s offset:%d nt" % (vr(V_KD + 4 * i, 4), V_KO, sp(S_D), 1024 * i))
    e("s_lshl_b32 s%d, s%d, 19" % (S_T2, S_G))
    e("s_lshl_b32 s%d, s%d, 14" % (S_T3, S_C))
    e("s_add_u32 s%d, s%d, s%d" % (S_T2, S_T2, S_T3))
    e("s_lshl_b32 s%d, s%d, 11" % (S_T3, S_W))
    e("s_add_u32 s%d, s%d, s%d" % (S_T2, S_T2, S_T3))
    e("s_add_u32 s%d, s%d, s%d" % (S_A, S_WO, S_T2))
    e("s_addc_u32 s%d, s%d, 0" % (S_A + 1, S_WO + 1))
    e("s_cmp_ge_u32 s%d, 4" % S_G)
    e("s_cselect_b32 s%d, s%d, s%d" % (S_B, S_W3, S_W1))
    e("s_cselect_b32 s%d, s%d, s%d" % (S_B + 1, S_W3 + 1, S_W1 + 1))
    e("s_lshl_b32 s%d, s%d, 7" % (S_T2, S_U2))
    e("s_lshl_b32 s%d, s%d, 3" % (S_T3, S_W))
    e("s_add_u32 s%d, s%d, s%d" % (S_T2, S_T2, S_T3))
    e("s_mul_i32 s%d, s%d, 3584" % (S_T2, S_T2))
    e("s_lshl_b32 s%d, s%d, 7" % (S_T3, S_C))
    e("s_add_u32 s%d, s%d, s%d" % (S_T2, S_T2, S_T3))
    e("s_add_u32 s%d, s%d, s%d" % (S_B, S_B, S_T2))
    e("s_addc_u32 s%d, s%d, 0" % (S_B + 1, S_B + 1))
    e("s_add_u32 s%d, s%d, %d" % (S_E, S_B, 64 * 3584))
    e("s_addc_u32 s%d, s%d, 0" % (S_E + 1, S_B + 1))
    e("s_mul_i32 s%d, s%d, 28" % (S_U3, S_G))
    e("s_add_u32 s%d, s%d, s%d" % (S_U3, S_U3, S_C))
    e("s_lshl_b32 s%d, s%d, 13" % (S_T2, S_U3))
    e("s_lshl_b32 s%d, s%d, 10" % (S_T3, S_W))
    e("s_add_u32 s%d, s%d, s%d" % (S_T2, S_T2, S_T3))
    e("s_add_u32 s%d, s%d, s%d" % (S_F, S_W2, S_T2))
    e("s_addc_u32 s%d, s%d, 0" % (S_F + 1, S_W2 + 1))
    e("v_bfe_u32 v%d, v1, 2, 2" % t)
    e("v_bfe_u32 v%d, v1, 4, 1" % (t + 1))
    e("v_lshlrev_b32 v%d, 2, v%d" % (t + 2, t))
    e("v_lshl_add_u32 v%d, v%d, 1, v%d" % (t + 2, t + 1, t + 2))
    e("v_lshrrev_b32 v%d, 5, v1" % (t + 3))
    e("v_lshl_add_u32 v%d, v%d, 4, v%d" % (t + 3, t + 3, t + 2))
    e("v_lshlrev_b32 v%d, 8, v%d" % (t + 3, t + 3))
    e("v_bfe_u32 v%d, v1, 1, 1" % (t + 4))
    e("s_lshl_b32 s%d, s%d, 1" % (S_T2, S_W))
    e("v_add_u32 v%d, s%d, v%d" % (t + 4, S_T2, t + 4))
    e("v_xor_b32 v%d, v%d, v%d" % (t + 4, t + 4, t + 2))
    e("v_lshl_add_u32 v%d, v%d, 4, v%d" % (t + 3, t + 4, t + 3))
    e("v_and_b32 v%d, 1, v1" % (t + 4))
    e("v_lshl_add_u32 v%d, v%d, 3, v%d" % (V_A2, t + 4, t + 3))
    e("s_waitcnt vmcnt(4)")
    g.stamp(6)
    e("s_barrier")
    for st in range(4):
        for hf in range(2):
            e("ds_read_b64_tr_b16 %s, v%d offset:%d" % (vr(V_VT + 4 * st + 2 * hf, 2), V_A2, st * 8192 + hf * 256))
    lab_nomlp1 = g.newlabel("nomlp")
    e("s_cmp_eq_u32 s%d, 0" % S_MLP)
    e("s_cbranch_scc1 %s" % lab_nomlp1)
    e("global_load_dwordx4 %s, v%d, %s nt" % (vr(V_MLD, 4), V_ML, sp(S_B)))
    e("global_load_dwordx4 %s, v%d, %s nt" % (vr(V_MLD + 4, 4), V_ML, sp(S_E)))
    e("global_load_dwordx4 %s, v%d, %s nt" % (vr(V_W2D, 4), V_L16, sp(S_F)))
    g.lab(lab_nomlp1)
    e("global_load_dwordx4 %s, v%d, %s nt" % (vr(V_WOD, 4), V_L16, sp(S_A)))
    e("global_load_dwordx4 %s, v%d, %s offset:1024 nt" % (vr(V_WOD + 4, 4), V_L16, sp(S_A)))
    for i in range(4):
        e("v_mov_b32 v%d, 0x3f803f80" % (V_ONE + i))
    e("v_and_b32 v%d, 3, v1" % t)
    e("v_lshrrev_b32 v%d, 4, v1" % (t + 1))
    e("v_mul_u32_u24 v%d, %d, v%d" % (t + 2, P_STRIDE, t))
    e("v_lshl_add_u32 v%d, v%d, 4, v%d" % (V_A3, t + 1, t + 2))
    e("v_lshl_add_u32 v%d, v%d, 3, v%d" % (V_A4, t + 1, t + 2))
    e("s_lshl_b32 s%d, s%d, 5" % (S_T2, S_W))
    e("v_add_u32 v%d, s%d, v%d" % (V_A4, S_T2, V_A4))
    e("v_lshlrev_b32 v%d, 5, v%d" % (t + 3, t))
    e("s_lshl_b32 s%d, s%d, 2" % (S_T2, S_W))
    e("v_add_u32 v%d, s%d, v%d" % (t + 4, S_T2, t + 3))
    e("s_barrier")
    e("ds_read_b128 %s, v%d offset:%d" % (vr(V_QB, 4), V_L16, LDS_QB))
    lab_k2 = g.newlabel("k2"); lab_k3 = g.newlabel("k3")
    e("s_cmp_eq_u32 s%d, 0" % S_MLP)
    e("s_cbranch_scc1 %s" % lab_k2)
    e("s_waitcnt vmcnt(5) lgkmcnt(0)")
    e("s_branch %s" % lab_k3)
    g.lab(lab_k2)
    e("s_waitcnt vmcnt(2) lgkmcnt(0)")
    g.lab(lab_k3)
    g.stamp(7)
    for i in range(4):
        e("v_mfma_f32_16x16x32_bf16 %s, %s, %s, 0" % (vr(V_D + 4 * i, 4), vr(V_KD + 4 * i, 4), vr(V_QB, 4)))
    g.nop(8)
    for i in range(4):
        e("v_add_f32_dpp v%d, v%d, v%d row_shl:4 row_mask:0xf bank_mask:0xf bound_ctrl:0" % (V_S + i, V_D + 4 * i + 1, V_D + 4 * i))
    for i in range(4):
        e("v_add_f32_dpp v%d, v%d, v%d row_shl:8 row_mask:0xf bank_mask:0xf bound_ctrl:0" % (V_S + i, V_D + 4 * i + 2, V_S + i))
    for i in range(4):
        e("v_add_f32_dpp v%d, v%d, v%d row_shl:12 row_mask:0xf bank_mask:0xf bound_ctrl:0" % (V_S + i, V_D + 4 * i + 3, V_S + i))
    e("v_cvt_pk_bf16_f32 v%d, v%d, v%d" % (V_D, V_S, V_S + 1))
    e("v_cvt_pk_bf16_f32 v%d, v%d, v%d" % (V_D + 1, V_S + 2, V_S + 3))
    for j in range(2):
        e("v_lshlrev_b32 v%d, 16, v%d" % (V_S + 2 * j, V_D + j))
        e("v_and_b32 v%d, s%d, v%d" % (V_S + 2 * j + 1, S_HI, V_D + j))
    for j in range(4):
        e("v_mul_f32 v%d, s%d, v%d" % (V_S + j, S_SCALE, V_S + j))
    e("v_cvt_pk_bf16_f32 v%d, v%d, v%d" % (V_D, V_S, V_S + 1))
    e("v_cvt_pk_bf16_f32 v%d, v%d, v%d" % (V_D + 1, V_S + 2, V_S + 3))
    for j in range(2):
        e("v_lshlrev_b32 v%d, 16, v%d" % (V_S + 2 * j, V_D + j))
        e("v_and_b32 v%d, s%d, v%d" % (V_S + 2 * j + 1, S_HI, V_D + j))
    e("v_max3_f32 v%d, v%d, v%d, v%d" % (V_D + 2, V_S, V_S + 1, V_S + 2))
    e("v_max_f32 v%d, v%d, v%d" % (V_D + 2, V_D + 2, V_S + 3))
    e("v_mov_b32 v%d, v%d" % (V_D + 3, V_D + 2))
    g.nop(2)
    e("v_permlane16_swap_b32 v%d, v%d" % (V_D + 2, V_D + 3))
    g.nop(1)
    e("v_max_f32 v%d, v%d, v%d" % (V_D + 2, V_D + 2, V_D + 3))
    e("v_mov_b32 v%d, v%d" % (V_D + 3, V_D + 2))
    g.nop(2)
    e("v_permlane32_swap_b32 v%d, v%d" % (V_D + 2, V_D + 3))
    g.nop(1)
    e("v_max_f32 v%d, v%d, v%d" % (V_D + 2, V_D + 2, V_D + 3))
    e("s_mov_b64 exec, 15")
    e("ds_write_b32 v%d, v%d offset:%d" % (t + 4, V_D + 2, LDS_MX))
    e("s_mov_b64 exec, -1")
    e("s_waitcnt lgkmcnt(0)")
    e("s_barrier")
    e("ds_read_b128 %s, v%d offset:%d" % (vr(V_D + 4, 4), t + 3, LDS_MX))
    e("ds_read_b128 %s, v%d offset:%d" % (vr(V_D + 8, 4), t + 3, LDS_MX + 16))
    e("s_waitcnt lgkmcnt(0)")
    e("v_max3_f32 v%d, v%d, v%d, v%d" % (V_D + 2, V_D + 4, V_D + 5, V_D + 6))
    e("v_max3_f32 v%d, v%d, v%d, v%d" % (V_D + 3, V_D + 7, V_D + 8, V_D + 9))
    e("v_max3_f32 v%d, v%d, v%d, v%d" % (V_D + 2, V_D + 2, V_D + 10, V_D + 11))
    e("v_max_f32 v%d, v%d, v%d" % (V_R + 2, V_D + 2, V_D + 3))
    for j in range(4):
        e("v_sub_f32 v%d, v%d, v%d" % (V_S + j, V_S + j, V_R + 2))
    for j in range(4):
        e("v_mul_f32 v%d, s%d, v%d" % (V_S + j, S_L2E, V_S + j))
    for j in range(4):
        e("v_exp_f32 v%d, v%d" % (V_S + j, V_S + j))
    g.nop(1)
    e("v_cvt_pk_bf16_f32 v%d, v%d, v%d" % (V_D, V_S, V_S + 1))
    e("v_cvt_pk_bf16_f32 v%d, v%d, v%d" % (V_D + 1, V_S + 2, V_S + 3))
    e("s_mov_b32 exec_lo, 0x000f000f")
    e("s_mov_b32 exec_hi, 0x000f000f")
    e("ds_write_b64 v%d, %s offset:%d" % (V_A4, vr(V_D, 2), LDS_P))
    e("s_mov_b64 exec, -1")
    e("s_waitcnt lgkmcnt(0)")
    e("s_barrier")
    for st in range(4):
        e("ds_read_b128 %s, v%d offset:%d" % (vr(V_PB + 4 * st, 4), V_A3, LDS_P + 64 * st))
    e("v_and_b32 v%d, 3, v1" % t)
    e("v_lshlrev_b32 v%d, 6, v%d" % (t, t))
    e("v_lshrrev_b32 v%d, 4, v1" % (t + 1))
    e("v_lshl_add_u32 v%d, v%d, 1, v%d" % (t, t + 1, t))
    e("v_bfe_u32 v%d, v1, 2, 1" % (t + 1))
    e("v_add_u32 v%d, v%d, v%d" % (t, t, t + 1))
    e("v_lshlrev_b32 v%d, 9, v%d" % (t, t))
    e("s_lshl_b32 s%d, s%d, 17" % (S_T2, S_G))
    e("s_lshl_b32 s%d, s%d, 12" % (S_T3, S_W))
    e("s_add_u32 s%d, s%d, s%d" % (S_T2, S_T2, S_T3))
    e("s_lshl_b32 s%d, s%d, 4" % (S_T3, S_C))
    e("s_add_u32 s%d, s%d, s%d" % (S_T2, S_T2, S_T3))
    e("s_add_u32 s%d, s%d, %d" % (S_T2, S_T2, WS_S2))
    e("v_add_u32 v%d, s%d, v%d" % (t, S_T2, t))
    e("s_mov_b32 s%d, 0xf0f0f0f0" % S_MASK)
    e("s_mov_b32 s%d, 0xf0f0f0f0" % (S_MASK + 1))
    for st in range(4):
        e("s_waitcnt lgkmcnt(%d)" % (3 - st))
        cin = "0" if st == 0 else vr(V_O, 4)
        cin2 = "0" if st == 0 else vr(V_LS, 4)
        e("v_mfma_f32_16x16x32_bf16 %s, %s, %s, %s" % (vr(V_O, 4), vr(V_VT + 4 * st, 4), vr(V_PB + 4 * st, 4), cin))
        e("v_mfma_f32_16x16x32_bf16 %s, %s, %s, %s" % (vr(V_LS, 4), vr(V_ONE, 4), vr(V_PB + 4 * st, 4), cin2))
    g.nop(9)
    e("v_cndmask_b32 v%d, v%d, v%d, %s" % (V_R, V_O, V_O + 2, sp(S_MASK)))
    e("v_cndmask_b32 v%d, v%d, v%d, %s" % (V_R + 1, V_O + 1, V_O + 3, sp(S_MASK)))
    e("v_mov_b32 v%d, v%d" % (V_R + 3, V_LS))
    for j in range(4):
        e("v_min_u32 v%d, -2, v%d" % (V_R + j, V_R + j))
    e("s_mov_b32 exec_lo, 0x00ff00ff")
    e("s_mov_b32 exec_hi, 0x00ff00ff")
    e("global_store_dwordx4 v%d, %s, %s sc1" % (t, vr(V_R, 4), sp(S_WS)))
    e("s_mov_b64 exec, -1")
    g.stamp(8)
    lab_nomlp2 = g.newlabel("nomlp")
    e("s_cmp_eq_u32 s%d, 0" % S_MLP)
    e("s_cbranch_scc1 %s" % lab_nomlp2)
    e("s_waitcnt vmcnt(4)")
    gemv_unit(g, V_MLD, V_XC, V_XD, V_XCH, V_XDH, V_ACC)
    reduce_scatter8(g, V_ACC, t + 1)
    e("ds_write_b32 v%d, v%d offset:%d" % (V_A1, t + 1, LDS_R1M))
    e("s_waitcnt lgkmcnt(0)")
    g.lab(lab_nomlp2)
    e("s_barrier")
    g.stamp(9)
    e("v_and_b32 v%d, 31, v1" % t)
    e("v_lshlrev_b32 v%d, 4, v%d" % (t, t))
    e("s_lshl_b32 s%d, s%d, 17" % (S_T2, S_G))
    e("s_lshl_b32 s%d, s%d, 12" % (S_T3, S_C))
    e("s_add_u32 s%d, s%d, s%d" % (S_T2, S_T2, S_T3))
    e("s_lshl_b32 s%d, s%d, 9" % (S_T3, S_W))
    e("s_add_u32 s%d, s%d, s%d" % (S_T2, S_T2, S_T3))
    e("s_add_u32 s%d, s%d, %d" % (S_T2, S_T2, WS_S2))
    e("v_add_u32 v%d, s%d, v%d" % (t, S_T2, t))
    e("s_mov_b32 s%d, %d" % (S_CNT, SPIN))
    lp = g.newlabel("s2poll"); dn = g.newlabel("s2done")
    g.lab(lp)
    e("global_load_dwordx4 %s, v%d, %s sc1" % (vr(V_R, 4), t, sp(S_WS)))
    e("s_waitcnt vmcnt(0)")
    e("v_max3_u32 v%d, v%d, v%d, v%d" % (t + 1, V_R, V_R + 1, V_R + 2))
    e("v_max_u32 v%d, v%d, v%d" % (t + 1, t + 1, V_R + 3))
    e("v_cmp_eq_u32 vcc, -1, v%d" % (t + 1))
    e("s_cbranch_vccz %s" % dn)
    e("s_sub_u32 s%d, s%d, 1" % (S_CNT, S_CNT))
    e("s_cmp_lg_u32 s%d, 0" % S_CNT)
    e("s_cbranch_scc1 %s" % lp)
    g.lab(dn)
    g.stamp(10)
    e("v_mov_b32 v%d, v%d" % (t + 1, V_R + 2))
    g.nop(2)
    wave_reduce(g, "max_f32", [t + 1], n=32)
    g.nop(1)
    e("v_readlane_b32 s%d, v%d, 31" % (S_T2, t + 1))
    g.nop(3)
    e("v_subrev_f32 v%d, s%d, v%d" % (t + 1, S_T2, V_R + 2))
    e("v_mul_f32 v%d, s%d, v%d" % (t + 1, S_L2E, t + 1))
    e("v_exp_f32 v%d, v%d" % (t + 1, t + 1))
    g.nop(1)
    e("v_mul_f32 v%d, v%d, v%d" % (V_R, V_R, t + 1))
    e("v_mul_f32 v%d, v%d, v%d" % (V_R + 1, V_R + 1, t + 1))
    e("v_mul_f32 v%d, v%d, v%d" % (V_R + 3, V_R + 3, t + 1))
    g.nop(2)
    wave_reduce(g, "add_f32", [V_R, V_R + 1, V_R + 3], n=32)
    g.nop(1)
    e("v_readlane_b32 s%d, v%d, 31" % (S_T2, V_R))
    e("v_readlane_b32 s%d, v%d, 31" % (S_T3, V_R + 1))
    e("v_readlane_b32 s%d, v%d, 31" % (S_U0, V_R + 3))
    g.nop(3)
    e("v_rcp_f32 v%d, s%d" % (t + 1, S_U0))
    g.nop(1)
    e("v_mul_f32 v%d, s%d, v%d" % (t + 2, S_T2, t + 1))
    e("v_mul_f32 v%d, s%d, v%d" % (t + 3, S_T3, t + 1))
    e("v_cvt_pk_bf16_f32 v%d, v%d, v%d" % (t + 4, t + 2, t + 3))
    e("v_and_b32 v%d, 0xffff, v%d" % (V_XA, t + 4))
    e("v_lshlrev_b32 v%d, 16, v%d" % (V_XAH, t + 4))
    e("v_lshrrev_b32 v%d, 16, v%d" % (V_XB, t + 4))
    e("v_and_b32 v%d, s%d, v%d" % (V_XBH, S_HI, t + 4))
    gemv_unit(g, V_WOD, V_XA, V_XB, V_XAH, V_XBH, V_ACC)
    e("s_barrier")
    g.stamp(11)
    lab_nomlp3 = g.newlabel("nomlp")
    e("s_cmp_eq_u32 s%d, 0" % S_MLP)
    e("s_cbranch_scc1 %s" % lab_nomlp3)
    e("s_lshl_b32 s%d, s%d, 1" % (S_T2, S_W))
    e("v_mov_b32 v%d, s%d" % (t, S_T2))
    e("ds_read_u16 v%d, v%d offset:%d" % (V_XC, t, LDS_H))
    e("s_waitcnt lgkmcnt(0)")
    e("v_lshlrev_b32 v%d, 16, v%d" % (V_XCH, V_XC))
    for j in range(4):
        e("v_dot2_f32_bf16 v%d, v%d, v%d, v%d" % (V_ACC + 2 * j, V_W2D + j, V_XC, V_ACC + 2 * j))
        e("v_dot2_f32_bf16 v%d, v%d, v%d, v%d" % (V_ACC + 2 * j + 1, V_W2D + j, V_XCH, V_ACC + 2 * j + 1))
    g.lab(lab_nomlp3)
    g.nop(4)
    e("v_lshlrev_b32 v%d, 5, v1" % t)
    e("s_lshl_b32 s%d, s%d, 11" % (S_T2, S_W))
    e("v_add_u32 v%d, s%d, v%d" % (t, S_T2, t))
    e("ds_write_b128 v%d, %s offset:%d" % (t, vr(V_ACC, 4), LDS_R3))
    e("ds_write_b128 v%d, %s offset:%d" % (t, vr(V_ACC + 4, 4), LDS_R3 + 16))
    e("s_waitcnt lgkmcnt(0)")
    e("s_barrier")
    e("s_cmp_ge_u32 s%d, 2" % S_W)
    e("s_cbranch_scc1 L_wend")
    e("s_lshl_b32 s%d, s%d, 10" % (S_T2, S_W))
    e("v_add_u32 v%d, s%d, v%d" % (t, S_T2, V_L16))
    for wv in range(8):
        e("ds_read_b128 %s, v%d offset:%d" % (vr(V_D + 4 * (wv % 4) + (0 if wv < 4 else 0), 4) if wv < 4 else vr(V_PB + 4 * (wv - 4), 4), t, LDS_R3 + wv * 2048))
    e("s_lshl_b32 s%d, s%d, 6" % (S_T2, S_W))
    e("v_add_u32 v%d, s%d, v1" % (t + 1, S_T2))
    e("v_mul_u32_u24 v%d, %d, v%d" % (t + 1, S3_STRIDE, t + 1))
    e("s_lshl_b32 s%d, s2, 4" % S_T2)
    e("s_add_u32 s%d, s%d, %d" % (S_T2, S_T2, WS_S3))
    e("v_add_u32 v%d, s%d, v%d" % (t + 1, S_T2, t + 1))
    e("s_waitcnt lgkmcnt(0)")
    for j in range(4):
        e("v_add_f32 v%d, v%d, v%d" % (V_D + j, V_D + j, V_D + 4 + j))
        e("v_add_f32 v%d, v%d, v%d" % (V_D + 8 + j, V_D + 8 + j, V_D + 12 + j))
        e("v_add_f32 v%d, v%d, v%d" % (V_PB + j, V_PB + j, V_PB + 4 + j))
        e("v_add_f32 v%d, v%d, v%d" % (V_PB + 8 + j, V_PB + 8 + j, V_PB + 12 + j))
    for j in range(4):
        e("v_add_f32 v%d, v%d, v%d" % (V_D + j, V_D + j, V_D + 8 + j))
        e("v_add_f32 v%d, v%d, v%d" % (V_PB + j, V_PB + j, V_PB + 8 + j))
    for j in range(4):
        e("v_add_f32 v%d, v%d, v%d" % (V_D + j, V_D + j, V_PB + j))
    for j in range(4):
        e("v_min_u32 v%d, -2, v%d" % (V_D + j, V_D + j))
    e("global_store_dwordx4 v%d, %s, %s sc1" % (t + 1, vr(V_D, 4), sp(S_WS)))
    g.stamp(12)
    g.lab("L_wend")
    e("s_branch L_fin")

    g.lab("L_sync")
    t = 4
    for i in range(4):
        e("v_mov_b32 v%d, -1" % (8 + i))
    e("s_and_b32 s%d, s%d, 3" % (S_T0, S_C))
    e("s_lshr_b32 s%d, s%d, 2" % (S_T1, S_C))
    e("s_lshl_b32 s%d, s%d, 13" % (S_T2, S_G))
    e("s_lshl_b32 s%d, s%d, 11" % (S_T3, S_T0))
    e("s_add_u32 s%d, s%d, s%d" % (S_T2, S_T2, S_T3))
    e("s_lshl_b32 s%d, s%d, 8" % (S_T3, S_T1))
    e("s_add_u32 s%d, s%d, s%d" % (S_T2, S_T2, S_T3))
    e("v_add_u32 v12, s%d, v3" % S_T2)
    e("s_mul_i32 s%d, s%d, 7168" % (S_T2, S_G))
    e("s_lshl_b32 s%d, s%d, 8" % (S_T3, S_C))
    e("s_add_u32 s%d, s%d, s%d" % (S_T2, S_T2, S_T3))
    e("s_add_u32 s%d, s%d, %d" % (S_T2, S_T2, WS_GP))
    e("v_add_u32 v13, s%d, v3" % S_T2)
    e("v_lshlrev_b32 v14, 9, v1")
    e("s_lshl_b32 s%d, s%d, 17" % (S_T2, S_G))
    e("s_lshl_b32 s%d, s%d, 4" % (S_T3, S_C))
    e("s_add_u32 s%d, s%d, s%d" % (S_T2, S_T2, S_T3))
    e("s_add_u32 s%d, s%d, %d" % (S_T2, S_T2, WS_S2))
    e("v_add_u32 v14, s%d, v14" % S_T2)
    e("v_add_u32 v15, 0x8000, v14")
    e("v_add_u32 v16, 0x10000, v14")
    e("v_add_u32 v17, 0x18000, v14")
    e("v_mul_u32_u24 v18, %d, v1" % S3_STRIDE)
    e("s_lshl_b32 s%d, s2, 4" % S_T2)
    e("s_add_u32 s%d, s%d, %d" % (S_T2, S_T2, WS_S3))
    e("v_add_u32 v18, s%d, v18" % S_T2)
    e("v_add_u32 v19, %d, v18" % (64 * S3_STRIDE))
    e("s_lshl_b32 s%d, s%d, 5" % (S_T2, S_G))
    e("s_add_u32 s%d, s%d, s%d" % (S_T2, S_T2, S_C))
    e("v_mov_b32 v20, s%d" % S_T2)
    e("v_mov_b32 v21, 1")
    e("v_lshlrev_b32 v22, 2, v1")
    e("s_waitcnt lgkmcnt(0)")
    g.stamp(1)
    e("s_mov_b64 exec, 0xffff")
    e("global_store_dwordx4 v12, v[8:11], %s sc1" % sp(S_WS))
    sk = g.newlabel("sk")
    e("s_cmp_eq_u32 s%d, 0" % S_MLP)
    e("s_cbranch_scc1 %s" % sk)
    e("global_store_dwordx4 v13, v[8:11], %s sc1" % sp(S_WS))
    g.lab(sk)
    e("s_mov_b64 exec, -1")
    for r in (14, 15, 16, 17, 18, 19):
        e("global_store_dwordx4 v%d, v[8:11], %s sc1" % (r, sp(S_WS)))
    e("v_lshrrev_b32 v23, 4, v1")
    e("s_lshl_b32 s%d, s2, 2" % S_T2)
    e("s_and_b32 s%d, s%d, 511" % (S_T2, S_T2))
    e("v_add_u32 v23, s%d, v23" % S_T2)
    e("v_lshlrev_b32 v23, 1, v23")
    e("global_load_ushort v24, v23, %s" % sp(S_X))
    e("s_barrier")
    e("s_waitcnt vmcnt(0)")
    g.stamp(2)
    e("s_mov_b64 exec, 1")
    e("global_store_byte v20, v21, %s sc1" % sp(S_DBG))
    e("s_mov_b64 exec, -1")
    e("s_barrier")
    g.stamp(3)
    def sum8(base, addr_store):
        e("s_mov_b64 exec, 0xffff")
        for wv in range(8):
            e("ds_read_b128 %s, v3 offset:%d" % (vr(32 + 4 * wv, 4), base + wv * 256))
        e("s_waitcnt lgkmcnt(0)")
        for j in range(4):
            e("v_add_f32 v%d, v%d, v%d" % (32 + j, 32 + j, 36 + j))
            e("v_add_f32 v%d, v%d, v%d" % (40 + j, 40 + j, 44 + j))
            e("v_add_f32 v%d, v%d, v%d" % (48 + j, 48 + j, 52 + j))
            e("v_add_f32 v%d, v%d, v%d" % (56 + j, 56 + j, 60 + j))
        for j in range(4):
            e("v_add_f32 v%d, v%d, v%d" % (32 + j, 32 + j, 40 + j))
            e("v_add_f32 v%d, v%d, v%d" % (48 + j, 48 + j, 56 + j))
        for j in range(4):
            e("v_add_f32 v%d, v%d, v%d" % (32 + j, 32 + j, 48 + j))
        for j in range(4):
            e("v_min_u32 v%d, -2, v%d" % (32 + j, 32 + j))
        e("global_store_dwordx4 v%d, v[32:35], %s sc1" % (addr_store, sp(S_WS)))
        e("s_mov_b64 exec, -1")
    sum8(LDS_R1, 12)
    g.stamp(4)
    e("global_load_dword v25, v22, %s sc1" % sp(S_DBG))
    e("s_mov_b32 s%d, 0x01010101" % S_U0)
    e("v_and_b32 v26, 3, v1")
    e("v_lshlrev_b32 v26, 9, v26")
    e("v_lshrrev_b32 v27, 4, v1")
    e("v_lshl_add_u32 v26, v27, 7, v26")
    e("v_bfe_u32 v27, v1, 2, 2")
    e("v_lshl_add_u32 v26, v27, 5, v26")
    e("s_lshl_b32 s%d, s%d, 13" % (S_T2, S_G))
    e("v_add_u32 v26, s%d, v26" % S_T2)
    e("v_add_u32 v27, 0x1000, v26")
    e("s_barrier")
    e("s_lshl_b32 s%d, s%d, 3" % (S_T2, S_G))
    e("s_lshl_b64 %s, 0xff, s%d" % (sp(S_MASK), S_T2))
    e("s_mov_b32 s%d, %d" % (S_CNT, SPIN))
    lp = g.newlabel("fpoll"); dn = g.newlabel("fdone")
    g.lab(lp)
    e("s_waitcnt vmcnt(0)")
    e("v_cmp_ne_u32 vcc, s%d, v25" % S_U0)
    e("s_mov_b64 %s, vcc" % sp(S_MASK2))
    e("s_and_b64 vcc, vcc, %s" % sp(S_MASK))
    e("s_cbranch_scc0 %s" % dn)
    e("global_load_dword v25, v22, %s sc1" % sp(S_DBG))
    e("s_sub_u32 s%d, s%d, 1" % (S_CNT, S_CNT))
    e("s_cmp_lg_u32 s%d, 0" % S_CNT)
    e("s_cbranch_scc1 %s" % lp)
    g.lab(dn)
    g.stamp(5)
    e("s_mov_b32 s%d, %d" % (S_CNT, SPIN))
    lp = g.newlabel("qpoll"); dn = g.newlabel("qdone")
    g.lab(lp)
    for rq in range(4):
        a_ = 26 if rq < 2 else 27
        off = (rq & 1) * 2048
        e("global_load_dwordx4 %s, v%d, %s offset:%d sc1" % (vr(32 + 8 * rq, 4), a_, sp(S_WS), off))
        e("global_load_dwordx4 %s, v%d, %s offset:%d sc1" % (vr(36 + 8 * rq, 4), a_, sp(S_WS), off + 16))
    e("s_waitcnt vmcnt(0)")
    e("v_max3_u32 v28, v32, v33, v34")
    for k in range(35, 63, 2):
        e("v_max3_u32 v28, v28, v%d, v%d" % (k, k + 1))
    e("v_max_u32 v28, v28, v63")
    e("v_cmp_eq_u32 vcc, -1, v28")
    e("s_cbranch_vccz %s" % dn)
    e("s_sub_u32 s%d, s%d, 1" % (S_CNT, S_CNT))
    e("s_cmp_lg_u32 s%d, 0" % S_CNT)
    e("s_cbranch_scc1 %s" % lp)
    g.lab(dn)
    g.stamp(6)
    for j in range(8):
        e("v_add_f32 v%d, v%d, v%d" % (32 + j, 32 + j, 40 + j))
        e("v_add_f32 v%d, v%d, v%d" % (48 + j, 48 + j, 56 + j))
    for j in range(8):
        e("v_add_f32 v%d, v%d, v%d" % (32 + j, 32 + j, 48 + j))
    for j in range(4):
        e("v_cvt_pk_bf16_f32 v%d, v%d, v%d" % (40 + j, 32 + 2 * j, 33 + 2 * j))
    e("ds_write_b128 v3, v[40:43] offset:%d" % LDS_QB)
    e("s_waitcnt lgkmcnt(0)")
    e("s_barrier")
    g.stamp(7)
    e("s_barrier")
    e("s_barrier")
    e("s_mov_b32 s%d, %d" % (S_CNT, SPIN))
    lp = g.newlabel("apoll"); dn = g.newlabel("adone")
    g.lab(lp)
    e("s_cmp_eq_u64 %s, 0" % sp(S_MASK2))
    e("s_cbranch_scc1 %s" % dn)
    e("global_load_dword v25, v22, %s sc1" % sp(S_DBG))
    e("s_waitcnt vmcnt(0)")
    e("v_cmp_ne_u32 vcc, s%d, v25" % S_U0)
    e("s_mov_b64 %s, vcc" % sp(S_MASK2))
    e("s_sub_u32 s%d, s%d, 1" % (S_CNT, S_CNT))
    e("s_cmp_lg_u32 s%d, 0" % S_CNT)
    e("s_cbranch_scc1 %s" % lp)
    g.lab(dn)
    e("s_barrier")
    g.stamp(8)
    nm = g.newlabel("nomlp")
    e("s_cmp_eq_u32 s%d, 0" % S_MLP)
    e("s_cbranch_scc1 %s" % nm)
    sum8(LDS_R1M, 13)
    g.stamp(9)
    e("s_mul_i32 s%d, s%d, 28" % (S_U3, S_G))
    e("s_add_u32 s%d, s%d, s%d" % (S_U3, S_U3, S_C))
    e("v_bfe_u32 v26, v1, 3, 1")
    e("v_lshlrev_b32 v26, 2, v26")
    e("v_and_b32 v27, 3, v1")
    e("v_add_u32 v26, v26, v27")
    e("v_mul_u32_u24 v26, 7168, v26")
    e("v_bfe_u32 v27, v1, 2, 1")
    e("v_lshl_add_u32 v26, v27, 4, v26")
    e("s_lshl_b32 s%d, s%d, 5" % (S_T2, S_U3))
    e("s_add_u32 s%d, s%d, %d" % (S_T2, S_T2, WS_GP))
    e("v_add_u32 v26, s%d, v26" % S_T2)
    e("s_mov_b64 exec, 0xffff")
    e("s_mov_b32 s%d, %d" % (S_CNT, SPIN))
    lp = g.newlabel("gpoll"); dn = g.newlabel("gdone")
    g.lab(lp)
    e("global_load_dwordx4 v[32:35], v26, %s sc1" % sp(S_WS))
    e("s_waitcnt vmcnt(0)")
    e("v_max3_u32 v28, v32, v33, v34")
    e("v_max_u32 v28, v28, v35")
    e("v_cmp_eq_u32 vcc, -1, v28")
    e("s_cbranch_vccz %s" % dn)
    e("s_sub_u32 s%d, s%d, 1" % (S_CNT, S_CNT))
    e("s_cmp_lg_u32 s%d, 0" % S_CNT)
    e("s_cbranch_scc1 %s" % lp)
    g.lab(dn)
    g.stamp(10)
    for qp in ("[1,0,3,2]", "[2,3,0,1]"):
        for j in range(4):
            e("v_add_f32_dpp v%d, v%d, v%d quad_perm:%s row_mask:0xf bank_mask:0xf" % (32 + j, 32 + j, 32 + j, qp))
    for j in range(4):
        bf16r(g, 32 + j, 32 + j)
    g.nop(2)
    for j in range(4):
        e("v_mov_b32_dpp v%d, v%d row_shl:8 row_mask:0xf bank_mask:0xf bound_ctrl:0" % (36 + j, 32 + j))
    for j in range(4):
        e("v_mul_f32 v%d, s%d, v%d" % (40 + j, S_L2E, 32 + j))
    for j in range(4):
        e("v_exp_f32 v%d, -v%d" % (40 + j, 40 + j))
    g.nop(1)
    for j in range(4):
        e("v_add_f32 v%d, 1.0, v%d" % (40 + j, 40 + j))
    for j in range(4):
        e("v_rcp_f32 v%d, v%d" % (44 + j, 40 + j))
    g.nop(1)
    for j in range(4):
        e("v_mul_f32 v%d, v%d, v%d" % (48 + j, 32 + j, 44 + j))
    for j in range(4):
        e("v_fma_f32 v%d, -v%d, v%d, v%d" % (52 + j, 48 + j, 40 + j, 32 + j))
    for j in range(4):
        e("v_fmac_f32 v%d, v%d, v%d" % (48 + j, 52 + j, 44 + j))
    for j in range(4):
        bf16r(g, 48 + j, 48 + j)
    for j in range(4):
        e("v_mul_f32 v%d, v%d, v%d" % (48 + j, 48 + j, 36 + j))
    e("v_cvt_pk_bf16_f32 v52, v48, v49")
    e("v_cvt_pk_bf16_f32 v53, v50, v51")
    e("v_bfe_u32 v27, v1, 2, 1")
    e("v_lshlrev_b32 v27, 3, v27")
    e("s_mov_b64 exec, 0x11")
    e("ds_write_b64 v27, v[52:53] offset:%d" % LDS_H)
    e("s_waitcnt lgkmcnt(0)")
    e("s_mov_b64 exec, -1")
    g.lab(nm)
    e("s_barrier")
    e("s_barrier")
    g.stamp(11)
    e("s_cmp_ge_u32 s2, 128")
    e("s_cbranch_scc1 L_fin")
    e("s_mul_i32 s%d, s2, %d" % (S_T2, S3_STRIDE))
    e("s_add_u32 s%d, s%d, %d" % (S_T2, S_T2, WS_S3))
    e("v_add_u32 v26, s%d, v3" % S_T2)
    e("s_mov_b32 s%d, %d" % (S_CNT, SPIN))
    lp = g.newlabel("opoll"); dn = g.newlabel("odone")
    g.lab(lp)
    for i in range(4):
        e("global_load_dwordx4 %s, v26, %s offset:%d sc1" % (vr(32 + 4 * i, 4), sp(S_WS), 1024 * i))
    e("s_waitcnt vmcnt(0)")
    e("v_max3_u32 v28, v32, v33, v34")
    for k in range(35, 47, 2):
        e("v_max3_u32 v28, v28, v%d, v%d" % (k, k + 1))
    e("v_max_u32 v28, v28, v47")
    e("v_cmp_eq_u32 vcc, -1, v28")
    e("s_cbranch_vccz %s" % dn)
    e("s_sub_u32 s%d, s%d, 1" % (S_CNT, S_CNT))
    e("s_cmp_lg_u32 s%d, 0" % S_CNT)
    e("s_cbranch_scc1 %s" % lp)
    g.lab(dn)
    g.stamp(12)
    for j in range(4):
        e("v_add_f32 v%d, v%d, v%d" % (32 + j, 32 + j, 36 + j))
        e("v_add_f32 v%d, v%d, v%d" % (40 + j, 40 + j, 44 + j))
    for j in range(4):
        e("v_add_f32 v%d, v%d, v%d" % (32 + j, 32 + j, 40 + j))
    g.nop(2)
    e("v_permlane32_swap_b32 v32, v34")
    e("v_permlane32_swap_b32 v33, v35")
    g.nop(1)
    e("v_add_f32 v32, v32, v34")
    e("v_add_f32 v33, v33, v35")
    g.nop(2)
    e("v_permlane16_swap_b32 v32, v33")
    g.nop(1)
    e("v_add_f32 v32, v32, v33")
    g.nop(2)
    for s in ("row_shr:1", "row_shr:2", "row_shr:4", "row_shr:8"):
        e("v_add_f32_dpp v32, v32, v32 %s row_mask:0xf bank_mask:0xf" % s)
        g.nop(2)
    e("v_lshlrev_b32 v24, 16, v24")
    e("v_add_f32 v32, v32, v24")
    e("v_cvt_pk_bf16_f32 v32, v32, v32")
    e("s_mov_b32 exec_lo, 0x80008000")
    e("s_mov_b32 exec_hi, 0x80008000")
    e("global_store_short v23, v32, %s" % sp(S_OUT))
    e("s_mov_b64 exec, -1")
    g.stamp(13)
    g.lab("L_fin")
    if stamps and o.get("dbgstamps"):
        sk2 = g.newlabel("nodbg")
        e("s_cmp_lg_u32 s2, 0")
        e("s_cbranch_scc1 %s" % sk2)
        e("s_cmp_lg_u32 s%d, 8" % S_W)
        e("s_cbranch_scc1 %s" % sk2)
        e("s_mov_b64 exec, 1")
        e("v_mov_b32 v2, 0")
        for i in range(16):
            e("s_sub_u32 s%d, s%d, s40" % (S_T2, 40 + 2 * i))
            e("v_mov_b32 v4, s%d" % S_T2)
            e("global_store_dword v2, v4, %s offset:%d sc1" % (sp(S_DBG), 4 * i))
            e("s_nop 1")
        g.lab(sk2)
    elif stamps:
        e("s_mul_i32 s%d, s2, 9" % S_T2)
        e("s_add_u32 s%d, s%d, s%d" % (S_T2, S_T2, S_W))
        e("s_lshl_b32 s%d, s%d, 7" % (S_T2, S_T2))
        e("s_add_u32 s%d, s%d, %d" % (S_T2, S_T2, WS_STAMP))
        e("v_mov_b32 v2, s%d" % S_T2)
        e("s_mov_b64 exec, 1")
        for i in range(16):
            e("v_mov_b32 v4, s%d" % (40 + 2 * i))
            e("v_mov_b32 v5, s%d" % (41 + 2 * i))
            e("global_store_dwordx2 v2, v[4:5], %s offset:%d" % (sp(S_WS), 8 * i))
            e("s_nop 1")
    g.lab("L_end")
    e("s_endpgm")
    tail = [
        '.section .rodata,"a"',
        ".p2align 6",
        ".amdhsa_kernel %s" % K,
        "  .amdhsa_next_free_vgpr %d" % NV,
        "  .amdhsa_next_free_sgpr 102",
        "  .amdhsa_accum_offset %d" % NV,
        "  .amdhsa_group_segment_fixed_size 0",
        "  .amdhsa_kernarg_size 96",
        "  .amdhsa_user_sgpr_count 2",
        "  .amdhsa_user_sgpr_kernarg_segment_ptr 1",
        "  .amdhsa_system_sgpr_workgroup_id_x 1",
        ".end_amdhsa_kernel",
    ]
    pre = []
    if stamps:
        pass
    return "\n".join(out + g.L + tail) + "\n"

if __name__ == "__main__":
    stamps = "--stamps" in sys.argv
    outp = [a for a in sys.argv[1:] if not a.startswith("--")]
    opts = {}
    for a in sys.argv[1:]:
        if a.startswith("--o:"):
            kv = a[4:].split("=")
            opts[kv[0]] = int(kv[1]) if len(kv) > 1 else 1
    txt = build(stamps, opts)
    open(outp[0], "w").write(txt)
    print("wrote", outp[0], len(txt.split("\n")), "lines")
```

```python
import sys

NAME = "parallel_sum__sliding_block_cached__glu_gated_swiglu__decode"

class G:
    def __init__(self, stamps=False, opts=None):
        self.L = []
        self.stamps = stamps
        self.o = opts or {}
        self.nlabel = 0
    def e(self, s):
        self.L.append("    " + s)
    def lab(self, s):
        self.L.append(s + ":")
    def c(self, s):
        self.L.append("    ; " + s)
    def newlabel(self, p):
        self.nlabel += 1
        return "L_%s_%d" % (p, self.nlabel)
    def nop(self, n):
        while n > 0:
            k = min(n, 16)
            self.e("s_nop %d" % (k - 1))
            n -= k
    def stamp(self, i):
        if self.stamps:
            self.e("s_memrealtime s[%d:%d]" % (40 + 2 * i, 41 + 2 * i))

WS_E = 0x0
WS_XT = 0x1000
WS_QR = 0x10000
WS_GP = 0x30000
WS_S2 = 0x100000
WS_S3 = 0x200000
S3_STRIDE = 16384 + 256
WS_STAMP = 0x800000

LDS_V = 0
LDS_W = 32768
LDS_XN = LDS_W + 24576
LDS_R1 = LDS_XN + 1024
LDS_R1M = LDS_R1 + 2048
LDS_Q = LDS_R1M + 2048
LDS_MX = LDS_Q + 1024
LDS_P = LDS_MX + 128
P_STRIDE = 272
LDS_AV = LDS_P + 4 * P_STRIDE
LDS_MODE = LDS_AV + 64
LDS_FR = LDS_MODE + 64
LDS_TOTAL = LDS_FR + 512

S_X, S_K, S_V, S_WQ, S_WO, S_BX, S_W1, S_W3 = 4, 6, 8, 10, 12, 14, 16, 18
S_W2, S_OUT, S_DBG, S_WS = 20, 22, 24, 26
S_G, S_C, S_W = 28, 29, 30
S_T0, S_T1, S_T2, S_T3 = 31, 32, 33, 34
S_CNT = 35
S_TAG = 36
S_MODE = 37
S_J = 38
S_XCC = 39
S_A, S_B, S_C2, S_D, S_E, S_F = 72, 74, 76, 78, 80, 82
S_MASK = 84
S_MASK2 = 86
S_U0, S_U1, S_U2, S_U3 = 88, 89, 90, 91
S_HI, S_L2E, S_SCALE, S_MLP = 92, 93, 94, 95
S_P0, S_P1, S_P2, S_Q1, S_Q2, S_M24 = 96, 97, 98, 99, 100, 101

def sp(r): return "s[%d:%d]" % (r, r + 1)
def vr(r, n): return "v[%d:%d]" % (r, r + n - 1)

def wave_reduce(g, op, v, n=64):
    steps = ["row_shr:1 row_mask:0xf", "row_shr:2 row_mask:0xf", "row_shr:4 row_mask:0xf", "row_shr:8 row_mask:0xf", "row_bcast:15 row_mask:0xa"]
    if n == 64:
        steps.append("row_bcast:31 row_mask:0xc")
    for s in steps:
        for r in v:
            g.e("v_%s_dpp v%d, v%d, v%d %s bank_mask:0xf" % (op, r, r, r, s))
        if len(v) < 3:
            g.nop(3 - len(v))

def gemv_unit(g, w0, xa, xb, xah, xbh, acc):
    for j in range(4):
        g.e("v_dot2_f32_bf16 v%d, v%d, v%d, 0" % (acc + 2 * j, w0 + j, xa))
        g.e("v_dot2_f32_bf16 v%d, v%d, v%d, 0" % (acc + 2 * j + 1, w0 + j, xah))
    for j in range(4):
        g.e("v_dot2_f32_bf16 v%d, v%d, v%d, v%d" % (acc + 2 * j, w0 + 4 + j, xb, acc + 2 * j))
        g.e("v_dot2_f32_bf16 v%d, v%d, v%d, v%d" % (acc + 2 * j + 1, w0 + 4 + j, xbh, acc + 2 * j + 1))

def reduce_scatter8(g, acc, dst):
    g.nop(4)
    for i in range(4):
        g.e("v_permlane32_swap_b32 v%d, v%d" % (acc + i, acc + 4 + i))
    g.nop(1)
    for i in range(4):
        g.e("v_add_f32 v%d, v%d, v%d" % (acc + i, acc + i, acc + 4 + i))
    g.nop(2)
    for i in range(2):
        g.e("v_permlane16_swap_b32 v%d, v%d" % (acc + i, acc + 2 + i))
    g.nop(1)
    for i in range(2):
        g.e("v_add_f32 v%d, v%d, v%d" % (acc + i, acc + i, acc + 2 + i))
    g.nop(2)
    g.e("v_add_f32_dpp v%d, v%d, v%d row_ror:8 row_mask:0xf bank_mask:0x3" % (dst, acc, acc))
    g.e("v_add_f32_dpp v%d, v%d, v%d row_ror:8 row_mask:0xf bank_mask:0xc" % (dst, acc + 1, acc + 1))

def rows_reduce4(g, x, op="add_f32"):
    g.nop(2)
    g.e("v_permlane32_swap_b32 v%d, v%d" % (x, x + 2))
    g.e("v_permlane32_swap_b32 v%d, v%d" % (x + 1, x + 3))
    g.nop(1)
    g.e("v_%s v%d, v%d, v%d" % (op, x, x, x + 2))
    g.e("v_%s v%d, v%d, v%d" % (op, x + 1, x + 1, x + 3))
    g.nop(2)
    g.e("v_permlane16_swap_b32 v%d, v%d" % (x, x + 1))
    g.nop(1)
    g.e("v_%s v%d, v%d, v%d" % (op, x, x, x + 1))

def bfly_rows(g, x, tmp, op):
    g.e("v_mov_b32 v%d, v%d" % (tmp, x))
    g.nop(2)
    g.e("v_permlane16_swap_b32 v%d, v%d" % (x, tmp))
    g.nop(1)
    g.e("v_%s v%d, v%d, v%d" % (op, x, x, tmp))
    g.e("v_mov_b32 v%d, v%d" % (tmp, x))
    g.nop(2)
    g.e("v_permlane32_swap_b32 v%d, v%d" % (x, tmp))
    g.nop(1)
    g.e("v_%s v%d, v%d, v%d" % (op, x, x, tmp))

def bf16r(g, dst, src):
    g.e("v_cvt_pk_bf16_f32 v%d, v%d, v%d" % (dst, src, src))
    g.e("v_lshlrev_b32 v%d, 16, v%d" % (dst, dst))

def pack4(g, a, dst):
    for j in range(4):
        g.e("v_add_u32 v%d, 0x80, v%d" % (a + j, a + j))
    g.e("v_perm_b32 v%d, v%d, v%d, s%d" % (dst, a + 1, a, S_P0))
    g.e("v_perm_b32 v%d, v%d, v%d, s%d" % (dst + 1, a + 2, a + 1, S_P1))
    g.e("v_perm_b32 v%d, v%d, v%d, s%d" % (dst + 2, a + 3, a + 2, S_P2))

def unpack4(g, w, dst):
    g.e("v_perm_b32 v%d, v%d, v%d, s%d" % (dst + 1, w + 1, w, S_Q1))
    g.e("v_perm_b32 v%d, v%d, v%d, s%d" % (dst + 2, w + 2, w + 1, S_Q2))
    g.e("v_and_b32 v%d, s%d, v%d" % (dst + 3, S_M24, w + 2))
    g.e("v_lshlrev_b32 v%d, 8, v%d" % (dst, w))

def layernorm(g, V_X, f, a, V_D, t, V_L16):
    e = g.e
    for j in range(4):
        e("v_lshlrev_b32 v%d, 16, v%d" % (f + 2 * j, V_X + j))
        e("v_and_b32 v%d, s%d, v%d" % (f + 2 * j + 1, S_HI, V_X + j))
    e("v_add_f32 v%d, v%d, v%d" % (a, f, f + 1))
    e("v_add_f32 v%d, v%d, v%d" % (a + 1, f + 2, f + 3))
    e("v_add_f32 v%d, v%d, v%d" % (a + 2, f + 4, f + 5))
    e("v_add_f32 v%d, v%d, v%d" % (a + 3, f + 6, f + 7))
    e("v_add_f32 v%d, v%d, v%d" % (a, a, a + 1))
    e("v_add_f32 v%d, v%d, v%d" % (a + 2, a + 2, a + 3))
    e("v_add_f32 v%d, v%d, v%d" % (a, a, a + 2))
    g.nop(2)
    wave_reduce(g, "add_f32", [a])
    g.nop(1)
    e("v_readlane_b32 s%d, v%d, 63" % (S_T2, a))
    g.nop(3)
    e("v_mov_b32 v%d, s%d" % (a + 4, S_T2))
    e("v_mul_f32 v%d, 0x3b000000, v%d" % (a + 4, a + 4))
    for j in range(8):
        e("v_sub_f32 v%d, v%d, v%d" % (V_D + j, f + j, a + 4))
    e("v_mul_f32 v%d, v%d, v%d" % (a, V_D, V_D))
    for j in range(1, 8):
        e("v_fmac_f32 v%d, v%d, v%d" % (a, V_D + j, V_D + j))
    g.nop(2)
    wave_reduce(g, "add_f32", [a])
    g.nop(1)
    e("v_readlane_b32 s%d, v%d, 63" % (S_T2, a))
    g.nop(3)
    e("v_mov_b32 v%d, s%d" % (a + 5, S_T2))
    e("v_mul_f32 v%d, 0x3b000000, v%d" % (a + 5, a + 5))
    bf16r(g, a + 4, a + 4)
    bf16r(g, a + 5, a + 5)
    e("v_add_f32 v%d, 0x3727c5ac, v%d" % (a + 5, a + 5))
    bf16r(g, a + 5, a + 5)
    e("v_sqrt_f32 v%d, v%d" % (a + 5, a + 5))
    g.nop(1)
    bf16r(g, a + 5, a + 5)
    e("v_rcp_f32 v%d, v%d" % (a + 6, a + 5))
    for j in range(8):
        e("v_sub_f32 v%d, v%d, v%d" % (f + j, f + j, a + 4))
    for j in range(4):
        e("v_cvt_pk_bf16_f32 v%d, v%d, v%d" % (V_D + j, f + 2 * j, f + 2 * j + 1))
    for j in range(4):
        e("v_lshlrev_b32 v%d, 16, v%d" % (f + 2 * j, V_D + j))
        e("v_and_b32 v%d, s%d, v%d" % (f + 2 * j + 1, S_HI, V_D + j))
    for j in range(8):
        e("v_mul_f32 v%d, v%d, v%d" % (V_D + j, f + j, a + 6))
    for j in range(8):
        e("v_fma_f32 v%d, -v%d, v%d, v%d" % (f + j, V_D + j, a + 5, f + j))
    for j in range(8):
        e("v_fmac_f32 v%d, v%d, v%d" % (V_D + j, f + j, a + 6))
    for j in range(4):
        e("v_cvt_pk_bf16_f32 v%d, v%d, v%d" % (V_X + j, V_D + 2 * j, V_D + 2 * j + 1))
    e("v_add_u32 v%d, %d, v%d" % (t, LDS_XN, V_L16))
    e("ds_write_b128 v%d, %s" % (t, vr(V_X, 4)))

def build(stamps=False, opts=None):
    g = G(stamps, opts)
    o = g.o
    SPIN = 1 << o.get("spin", 16)
    S3SLEEP = o.get("s3sleep", 6)
    K = NAME + "_kernel"
    hdr = open("cdna_kernels/%s.s.ref" % NAME).read().split("\n")
    top = []
    for line in hdr:
        if line.startswith("; Override") or line.startswith("; grid=") or line.startswith("; @launch"):
            continue
        if line.startswith(";"):
            top.append(line)
        else:
            break
    out = top + [
        "; Single persistent launch: 256 workgroups x (8 worker waves + 1 sync wave). Generated by dev/gen2.py (hand-written generator).",
        "; @launch grid=(256,1,1) block=(576,1,1) lds=%d" % LDS_TOTAL,
        '.amdgcn_target "amdgcn-amd-amdhsa--gfx950"',
        ".text",
        ".globl %s" % K,
        ".p2align 8",
        ".type %s,@function" % K,
        K + ":",
    ]
    e = g.e
    def spin_tail(lp):
        e("s_sub_u32 s%d, s%d, 1" % (S_CNT, S_CNT))
        e("s_cmp_lg_u32 s%d, 0" % S_CNT)
        e("s_cbranch_scc1 %s" % lp)
    e("s_cmp_ge_u32 s2, 256")
    e("s_cbranch_scc1 L_end")
    e("s_load_dwordx16 s[4:19], s[0:1], 0")
    e("s_load_dwordx8 s[20:27], s[0:1], 64")
    g.stamp(0)
    e("v_and_b32 v1, 63, v0")
    e("v_lshrrev_b32 v2, 6, v0")
    e("s_and_b32 s%d, s2, 7" % S_G)
    e("s_lshr_b32 s%d, s2, 3" % S_C)
    e("v_readfirstlane_b32 s%d, v2" % S_W)
    e("s_mov_b32 s%d, 0xffff0000" % S_HI)
    e("s_mov_b32 s%d, 0x3fb8aa3b" % S_L2E)
    e("s_mov_b32 s%d, 0x3db504f3" % S_SCALE)
    e("s_mov_b32 s%d, 0x05030201" % S_P0)
    e("s_mov_b32 s%d, 0x06050302" % S_P1)
    e("s_mov_b32 s%d, 0x07060503" % S_P2)
    e("s_mov_b32 s%d, 0x0504030c" % S_Q1)
    e("s_mov_b32 s%d, 0x0403020c" % S_Q2)
    e("s_mov_b32 s%d, 0xffffff00" % S_M24)
    e("s_cmp_lt_u32 s%d, 28" % S_C)
    e("s_cselect_b32 s%d, 1, 0" % S_MLP)
    e("s_mul_i32 s%d, s%d, 28" % (S_J, S_G))
    e("s_add_u32 s%d, s%d, s%d" % (S_J, S_J, S_C))
    e("v_lshlrev_b32 v3, 4, v1")
    e("s_cmp_eq_u32 s%d, 8" % S_W)
    e("s_cbranch_scc1 L_sync")

    V_L, V_L16 = 1, 3
    V_WQ, V_ML, V_KO = 4, 5, 6
    V_V0 = 7
    V_T = 11
    V_X = 20
    V_WQD = 24
    V_KD = 32
    V_MLD = 48
    V_VT = 56
    V_F = 72
    V_ACC = 80
    V_XA, V_XB, V_XAH, V_XBH = 88, 89, 90, 91
    V_XC, V_XD, V_XCH, V_XDH = 92, 93, 94, 95
    V_QB = 96
    V_D = 100
    V_S = 116
    PB = [24, 28, 48, 52]
    V_O, V_LS, V_ONE, V_R = 72, 76, 80, 84
    V_A1, V_A2, V_A3, V_A4, V_A5, V_A6 = 120, 121, 122, 123, 124, 125
    V_AQ, V_AQW, V_AQB, V_AS2, V_AS3, V_AW0, V_AW1, V_AAV = 126, 127, 128, 129, 130, 131, 132, 133
    V_WO0, V_WO1, V_W2O = 134, 135, 136
    V_AI = 137
    V_AFR = 138
    NV = 140
    t = V_T
    e("v_lshrrev_b32 v%d, 3, v1" % t)
    e("v_and_b32 v%d, 7, v1" % (t + 1))
    e("v_lshlrev_b32 v%d, 4, v%d" % (t + 1, t + 1))
    e("v_lshl_add_u32 v%d, v%d, 13, v%d" % (V_WQ, t, t + 1))
    e("v_mul_u32_u24 v%d, 3584, v%d" % (V_ML, t))
    e("v_add_u32 v%d, v%d, v%d" % (V_ML, V_ML, t + 1))
    e("v_bfe_u32 v%d, v1, 2, 2" % (t + 2))
    e("v_lshlrev_b32 v%d, 8, v%d" % (V_KO, t + 2))
    e("v_lshrrev_b32 v%d, 4, v1" % (t + 3))
    e("v_lshl_add_u32 v%d, v%d, 6, v%d" % (V_KO, t + 3, V_KO))
    e("v_and_b32 v%d, 3, v1" % (t + 4))
    e("v_lshl_add_u32 v%d, v%d, 4, v%d" % (V_KO, t + 4, V_KO))
    e("v_lshrrev_b32 v%d, 5, v1" % (t + 5))
    e("v_lshlrev_b32 v%d, 1, v%d" % (t + 5, t + 5))
    e("v_and_b32 v%d, 15, v1" % (t + 6))
    e("v_xor_b32 v%d, v%d, v%d" % (t + 5, t + 5, t + 6))
    e("v_lshlrev_b32 v%d, 4, v%d" % (t + 5, t + 5))
    e("v_lshl_add_u32 v%d, v%d, 8, v%d" % (V_V0, t + 3, t + 5))
    for i in range(1, 4):
        e("v_xor_b32 v%d, %d, v%d" % (V_V0 + i, 64 * i, V_V0))
    e("s_and_b32 s%d, s%d, 3" % (S_T0, S_C))
    e("s_lshr_b32 s%d, s%d, 2" % (S_T1, S_C))
    e("s_lshl_b32 s%d, s%d, 20" % (S_U0, S_T0))
    e("s_lshl_b32 s%d, s%d, 16" % (S_T2, S_W))
    e("s_add_u32 s%d, s%d, s%d" % (S_U0, S_U0, S_T2))
    e("s_lshl_b32 s%d, s%d, 10" % (S_T2, S_G))
    e("s_add_u32 s%d, s%d, s%d" % (S_U0, S_U0, S_T2))
    e("s_lshl_b32 s%d, s%d, 7" % (S_T2, S_T1))
    e("s_add_u32 s%d, s%d, s%d" % (S_U0, S_U0, S_T2))
    e("s_lshl_b32 s%d, s%d, 24" % (S_U1, S_G))
    e("s_lshl_b32 s%d, s%d, 15" % (S_T2, S_C))
    e("s_add_u32 s%d, s%d, s%d" % (S_U1, S_U1, S_T2))
    e("s_lshl_b32 s%d, s%d, 12" % (S_T2, S_W))
    e("s_add_u32 s%d, s%d, s%d" % (S_U1, S_U1, S_T2))
    e("s_add_u32 s%d, s%d, 0xF00000" % (S_U1, S_U1))
    e("s_mov_b32 m0, s%d" % S_T2)
    e("s_and_b32 s%d, s%d, 3" % (S_U2, S_G))
    e("s_lshl_b32 s%d, s%d, 7" % (S_T2, S_U2))
    e("s_lshl_b32 s%d, s%d, 3" % (S_T3, S_W))
    e("s_add_u32 s%d, s%d, s%d" % (S_T2, S_T2, S_T3))
    e("s_mul_i32 s%d, s%d, 3584" % (S_T2, S_T2))
    e("s_lshl_b32 s%d, s%d, 7" % (S_T3, S_C))
    e("s_add_u32 s%d, s%d, s%d" % (S_U3, S_T2, S_T3))
    e("s_waitcnt lgkmcnt(0)")
    g.stamp(1)
    e("s_add_u32 s%d, s%d, s%d" % (S_A, S_WQ, S_U0))
    e("s_addc_u32 s%d, s%d, 0" % (S_A + 1, S_WQ + 1))
    e("s_add_u32 s%d, s%d, 0x80000" % (S_B, S_A))
    e("s_addc_u32 s%d, s%d, 0" % (S_B + 1, S_A + 1))
    e("s_barrier")
    e("global_load_dwordx4 %s, v%d, %s nt" % (vr(V_WQD, 4), V_WQ, sp(S_A)))
    e("global_load_dwordx4 %s, v%d, %s nt" % (vr(V_WQD + 4, 4), V_WQ, sp(S_B)))
    e("s_add_u32 s%d, s%d, s%d" % (S_C2, S_V, S_U1))
    e("s_addc_u32 s%d, s%d, 0" % (S_C2 + 1, S_V + 1))
    e("s_add_u32 s%d, s%d, s%d" % (S_D, S_K, S_U1))
    e("s_addc_u32 s%d, s%d, 0" % (S_D + 1, S_K + 1))
    e("s_cmp_ge_u32 s%d, 4" % S_G)
    e("s_cselect_b32 s%d, s%d, s%d" % (S_E, S_W3, S_W1))
    e("s_cselect_b32 s%d, s%d, s%d" % (S_E + 1, S_W3 + 1, S_W1 + 1))
    e("s_add_u32 s%d, s%d, s%d" % (S_E, S_E, S_U3))
    e("s_addc_u32 s%d, s%d, 0" % (S_E + 1, S_E + 1))
    e("s_add_u32 s%d, s%d, %d" % (S_F, S_E, 64 * 3584))
    e("s_addc_u32 s%d, s%d, 0" % (S_F + 1, S_E + 1))
    nm = g.newlabel("hasmlp")
    e("s_cmp_eq_u32 s%d, 1" % S_MLP)
    e("s_cbranch_scc1 %s" % nm)
    e("s_mov_b64 %s, %s" % (sp(S_E), sp(S_X)))
    e("s_mov_b64 %s, %s" % (sp(S_F), sp(S_X)))
    e("v_mov_b32 v%d, v%d" % (V_ML, V_L16))
    g.lab(nm)
    e("s_barrier")
    e("global_load_dwordx4 %s, v%d, %s nt" % (vr(V_MLD, 4), V_ML, sp(S_E)))
    e("global_load_dwordx4 %s, v%d, %s nt" % (vr(V_MLD + 4, 4), V_ML, sp(S_F)))
    for i in range(4):
        e("global_load_dwordx4 %s, v%d, %s offset:%d nt" % (vr(V_KD + 4 * i, 4), V_KO, sp(S_D), 1024 * i))
    e("v_and_b32 v%d, 7, v1" % (t + 1))
    e("v_lshlrev_b32 v%d, 5, v%d" % (V_A1, t + 1))
    e("v_bfe_u32 v%d, v1, 3, 3" % (t + 1))
    e("v_lshl_add_u32 v%d, v%d, 2, v%d" % (V_A1, t + 1, V_A1))
    e("s_lshl_b32 s%d, s%d, 8" % (S_T2, S_W))
    e("v_add_u32 v%d, s%d, v%d" % (V_A1, S_T2, V_A1))
    e("v_bfe_u32 v%d, v1, 2, 2" % t)
    e("v_bfe_u32 v%d, v1, 4, 1" % (t + 1))
    e("v_lshlrev_b32 v%d, 2, v%d" % (t + 2, t))
    e("v_lshl_add_u32 v%d, v%d, 1, v%d" % (t + 2, t + 1, t + 2))
    e("v_lshrrev_b32 v%d, 5, v1" % (t + 3))
    e("v_lshl_add_u32 v%d, v%d, 4, v%d" % (t + 3, t + 3, t + 2))
    e("v_lshlrev_b32 v%d, 8, v%d" % (t + 3, t + 3))
    e("v_bfe_u32 v%d, v1, 1, 1" % (t + 4))
    e("s_lshl_b32 s%d, s%d, 1" % (S_T2, S_W))
    e("v_add_u32 v%d, s%d, v%d" % (t + 4, S_T2, t + 4))
    e("v_xor_b32 v%d, v%d, v%d" % (t + 4, t + 4, t + 2))
    e("v_lshl_add_u32 v%d, v%d, 4, v%d" % (t + 3, t + 4, t + 3))
    e("v_and_b32 v%d, 1, v1" % (t + 4))
    e("v_lshl_add_u32 v%d, v%d, 3, v%d" % (V_A2, t + 4, t + 3))
    e("v_and_b32 v%d, 3, v1" % t)
    e("v_lshrrev_b32 v%d, 4, v1" % (t + 1))
    e("v_mul_u32_u24 v%d, %d, v%d" % (t + 2, P_STRIDE, t))
    e("v_lshl_add_u32 v%d, v%d, 4, v%d" % (V_A3, t + 1, t + 2))
    e("v_lshl_add_u32 v%d, v%d, 3, v%d" % (V_A4, t + 1, t + 2))
    e("s_lshl_b32 s%d, s%d, 5" % (S_T2, S_W))
    e("v_add_u32 v%d, s%d, v%d" % (V_A4, S_T2, V_A4))
    e("v_lshlrev_b32 v%d, 5, v%d" % (V_A6, t))
    e("s_lshl_b32 s%d, s%d, 2" % (S_T2, S_W))
    e("v_add_u32 v%d, s%d, v%d" % (V_A5, S_T2, V_A6))
    e("v_and_b32 v%d, 15, v1" % (t + 2))
    e("v_lshlrev_b32 v%d, 4, v%d" % (V_AQ, t + 2))
    e("v_lshl_add_u32 v%d, v%d, 11, v%d" % (V_AQ, t + 1, V_AQ))
    e("s_lshl_b32 s%d, s%d, 13" % (S_T2, S_G))
    e("s_lshl_b32 s%d, s%d, 8" % (S_T3, S_W))
    e("s_add_u32 s%d, s%d, s%d" % (S_T2, S_T2, S_T3))
    e("s_add_u32 s%d, s%d, %d" % (S_T2, S_T2, WS_QR))
    e("v_add_u32 v%d, s%d, v%d" % (V_AQ, S_T2, V_AQ))
    e("v_lshlrev_b32 v%d, 3, v%d" % (V_AQW, t + 2))
    e("v_lshl_add_u32 v%d, v%d, 1, v%d" % (V_AQW, t + 1, V_AQW))
    e("s_lshl_b32 s%d, s%d, 7" % (S_T2, S_W))
    e("v_add_u32 v%d, s%d, v%d" % (V_AQW, S_T2, V_AQW))
    e("v_lshlrev_b32 v%d, 8, v%d" % (V_AQB, t))
    e("v_lshl_add_u32 v%d, v%d, 6, v%d" % (V_AQB, t + 1, V_AQB))
    e("v_bfe_u32 v%d, v1, 2, 2" % (t + 3))
    e("v_lshl_add_u32 v%d, v%d, 4, v%d" % (V_AQB, t + 3, V_AQB))
    e("v_and_b32 v%d, 7, v1" % (t + 3))
    e("v_lshlrev_b32 v%d, 4, v%d" % (V_AS2, t + 3))
    e("v_lshl_add_u32 v%d, v%d, 12, v%d" % (V_AS2, t + 1, V_AS2))
    e("s_lshl_b32 s%d, s%d, 17" % (S_T2, S_G))
    e("s_lshl_b32 s%d, s%d, 14" % (S_T3, S_W))
    e("s_add_u32 s%d, s%d, s%d" % (S_T2, S_T2, S_T3))
    e("s_lshl_b32 s%d, s%d, 7" % (S_T3, S_C))
    e("s_add_u32 s%d, s%d, s%d" % (S_T2, S_T2, S_T3))
    e("s_add_u32 s%d, s%d, %d" % (S_T2, S_T2, WS_S2))
    e("v_add_u32 v%d, s%d, v%d" % (V_AS2, S_T2, V_AS2))
    e("s_lshl_b32 s%d, s%d, 2" % (S_T2, S_W))
    e("v_add_u32 v%d, s%d, v%d" % (t + 3, S_T2, t + 1))
    e("v_mul_u32_u24 v%d, %d, v%d" % (V_AS3, S3_STRIDE, t + 3))
    e("v_lshl_add_u32 v%d, v%d, 4, v%d" % (V_AS3, t, V_AS3))
    e("s_lshl_b32 s%d, s2, 6" % S_T2)
    e("s_add_u32 s%d, s%d, %d" % (S_T2, S_T2, WS_S3))
    e("v_add_u32 v%d, s%d, v%d" % (V_AS3, S_T2, V_AS3))
    e("v_bfe_u32 v%d, v1, 2, 2" % (t + 2))
    e("v_and_b32 v%d, 3, v1" % (t + 3))
    e("v_and_b32 v%d, 1, v%d" % (t + 4, t + 1))
    e("s_lshl_b32 s%d, s%d, 1" % (S_T2, S_MLP))
    e("v_cmp_eq_u32 vcc, s%d, v%d" % (S_T2, t + 1))
    e("v_cndmask_b32 v%d, v%d, v%d, vcc" % (t + 4, t + 4, t + 1))
    e("v_lshl_add_u32 v%d, v%d, 3, v%d" % (t + 4, t + 4, t + 2))
    e("v_lshlrev_b32 v%d, 10, v%d" % (t + 4, t + 4))
    e("v_and_b32 v%d, 1, v%d" % (t + 5, t + 2))
    e("v_bfe_u32 v%d, v%d, 1, 1" % (t + 6, t + 2))
    e("v_lshl_add_u32 v%d, v%d, 3, v%d" % (t + 5, t + 6, t + 5))
    e("s_lshl_b32 s%d, s%d, 3" % (S_T2, S_W))
    e("v_lshl_add_u32 v%d, v%d, 1, s%d" % (t + 6, t + 3, S_T2))
    e("v_xor_b32 v%d, v%d, v%d" % (t + 6, t + 6, t + 5))
    e("v_lshl_add_u32 v%d, v%d, 4, v%d" % (V_AW0, t + 6, t + 4))
    e("v_add_u32 v%d, %d, v%d" % (V_AW0, LDS_W, V_AW0))
    e("v_xor_b32 v%d, 16, v%d" % (V_AW1, V_AW0))
    e("v_lshlrev_b32 v%d, 4, v%d" % (V_AAV, t + 1))
    e("s_and_b32 s%d, s%d, 1" % (S_T2, S_W))
    e("s_lshl_b32 s%d, s%d, 3" % (S_T3, S_T2))
    e("v_xor_b32 v%d, s%d, v1" % (V_WO0, S_T3))
    e("v_xor_b32 v%d, 1, v%d" % (V_WO1, V_WO0))
    e("v_lshlrev_b32 v%d, 4, v%d" % (V_WO0, V_WO0))
    e("v_lshlrev_b32 v%d, 4, v%d" % (V_WO1, V_WO1))
    e("v_add_u32 v%d, 1024, v%d" % (V_WO1, V_WO1))
    e("s_bfe_u32 s%d, s%d, 0x10001" % (S_T3, S_W))
    e("s_lshl_b32 s%d, s%d, 3" % (S_T3, S_T3))
    e("s_or_b32 s%d, s%d, s%d" % (S_T3, S_T3, S_T2))
    e("v_xor_b32 v%d, s%d, v1" % (V_W2O, S_T3))
    e("v_lshlrev_b32 v%d, 4, v%d" % (V_W2O, V_W2O))
    e("s_lshl_b32 s%d, s%d, 19" % (S_U0, S_G))
    e("s_lshr_b32 s%d, s%d, 1" % (S_T3, S_W))
    e("s_lshl_b32 s%d, s%d, 17" % (S_T3, S_T3))
    e("s_add_u32 s%d, s%d, s%d" % (S_U0, S_U0, S_T3))
    e("s_lshl_b32 s%d, s%d, 12" % (S_T3, S_C))
    e("s_add_u32 s%d, s%d, s%d" % (S_U0, S_U0, S_T3))
    e("s_lshl_b32 s%d, s%d, 11" % (S_T3, S_T2))
    e("s_add_u32 s%d, s%d, s%d" % (S_U0, S_U0, S_T3))
    e("s_add_u32 s%d, s%d, s%d" % (S_A, S_WO, S_U0))
    e("s_addc_u32 s%d, s%d, 0" % (S_A + 1, S_WO + 1))
    e("s_lshl_b32 s%d, s%d, 13" % (S_U0, S_J))
    e("s_lshl_b32 s%d, s%d, 10" % (S_T3, S_W))
    e("s_add_u32 s%d, s%d, s%d" % (S_U0, S_U0, S_T3))
    e("s_cmp_eq_u32 s%d, 1" % S_MLP)
    e("s_cselect_b32 s%d, s%d, 0" % (S_U0, S_U0))
    e("s_cselect_b32 s%d, s%d, s%d" % (S_B, S_W2, S_X))
    e("s_cselect_b32 s%d, s%d, s%d" % (S_B + 1, S_W2 + 1, S_X + 1))
    e("s_add_u32 s%d, s%d, s%d" % (S_B, S_B, S_U0))
    e("s_addc_u32 s%d, s%d, 0" % (S_B + 1, S_B + 1))
    e("s_mul_i32 s%d, s2, %d" % (S_T2, S3_STRIDE))
    e("s_lshl_b32 s%d, s%d, 11" % (S_T3, S_W))
    e("s_add_u32 s%d, s%d, s%d" % (S_T2, S_T2, S_T3))
    e("s_add_u32 s%d, s%d, %d" % (S_T2, S_T2, WS_S3))
    e("v_add_u32 v%d, s%d, v%d" % (V_AI, S_T2, V_L16))
    e("v_lshlrev_b32 v%d, 4, v%d" % (V_AFR, t))
    e("v_lshl_add_u32 v%d, v%d, 2, v%d" % (V_AFR, t + 1, V_AFR))
    e("s_lshl_b32 s%d, s%d, 6" % (S_T2, S_W))
    e("v_add_u32 v%d, s%d, v%d" % (V_AFR, S_T2, V_AFR))
    e("v_lshrrev_b32 v%d, 3, v1" % (t + 1))
    e("v_lshlrev_b32 v%d, 1, v%d" % (t + 1, t + 1))
    e("s_lshl_b32 s%d, s%d, 8" % (S_T2, S_T0))
    e("s_lshl_b32 s%d, s%d, 4" % (S_T3, S_W))
    e("s_add_u32 s%d, s%d, s%d" % (S_T2, S_T2, S_T3))
    e("s_add_u32 s%d, s%d, %d" % (S_T2, S_T2, LDS_XN))
    e("v_add_u32 v%d, s%d, v%d" % (t + 2, S_T2, t + 1))
    e("s_lshl_b32 s%d, s%d, 8" % (S_T2, S_U2))
    e("s_add_u32 s%d, s%d, s%d" % (S_T2, S_T2, S_T3))
    e("s_add_u32 s%d, s%d, %d" % (S_T2, S_T2, LDS_XN))
    e("v_add_u32 v%d, s%d, v%d" % (t + 3, S_T2, t + 1))
    e("s_barrier")
    g.stamp(2)
    e("ds_read_u16 v%d, v%d" % (V_XA, t + 2))
    e("ds_read_u16 v%d, v%d offset:128" % (V_XB, t + 2))
    e("ds_read_u16 v%d, v%d" % (V_XC, t + 3))
    e("ds_read_u16 v%d, v%d offset:128" % (V_XD, t + 3))
    e("v_mov_b32 v%d, %d" % (t + 4, LDS_MODE))
    e("ds_read_b32 v%d, v%d offset:4" % (t + 4, t + 4))
    e("s_waitcnt lgkmcnt(0)")
    e("v_readfirstlane_b32 s%d, v%d" % (S_TAG, t + 4))
    e("v_lshlrev_b32 v%d, 16, v%d" % (V_XAH, V_XA))
    e("v_lshlrev_b32 v%d, 16, v%d" % (V_XBH, V_XB))
    e("v_lshlrev_b32 v%d, 16, v%d" % (V_XCH, V_XC))
    e("v_lshlrev_b32 v%d, 16, v%d" % (V_XDH, V_XD))
    g.stamp(3)
    e("s_waitcnt vmcnt(6)")
    g.stamp(4)
    gemv_unit(g, V_WQD, V_XA, V_XB, V_XAH, V_XBH, V_ACC)
    reduce_scatter8(g, V_ACC, t)
    e("ds_write_b32 v%d, v%d offset:%d" % (V_A1, t, LDS_R1))
    e("s_not_b32 s%d, s%d" % (S_T2, S_TAG))
    e("v_mov_b32 v%d, s%d" % (V_R + 3, S_T2))
    e("s_mov_b32 exec_lo, 0x000f000f")
    e("s_mov_b32 exec_hi, 0x000f000f")
    e("global_store_dwordx4 v%d, %s, %s sc1" % (V_AS3, vr(V_R, 4), sp(S_WS)))
    e("s_mov_b64 exec, -1")
    e("s_waitcnt lgkmcnt(0)")
    e("s_barrier")
    g.stamp(5)
    e("s_waitcnt vmcnt(5)")
    for i in range(4):
        e("global_load_lds_dwordx4 v%d, %s offset:%d nt" % (V_V0 + i, sp(S_C2), 1024 * i))
    gemv_unit(g, V_MLD, V_XC, V_XD, V_XCH, V_XDH, V_ACC)
    reduce_scatter8(g, V_ACC, t)
    e("ds_write_b32 v%d, v%d offset:%d" % (V_A1, t, LDS_R1M))
    e("s_waitcnt lgkmcnt(0)")
    e("s_barrier")
    g.stamp(6)
    for i in range(4):
        e("v_mov_b32 v%d, 0x3f803f80" % (V_ONE + i))
    e("s_mov_b32 s%d, 0xf0f0f0f0" % S_MASK)
    e("s_mov_b32 s%d, 0xf0f0f0f0" % (S_MASK + 1))
    e("s_waitcnt vmcnt(5)")
    e("s_barrier")
    g.stamp(7)
    e("global_load_dwordx4 %s, v%d, %s sc1" % (vr(V_R, 4), V_AQ, sp(S_WS)))
    e("s_lshl_b32 s%d, s%d, 11" % (S_T2, S_W))
    e("s_add_u32 m0, s%d, %d" % (S_T2, LDS_W))
    g.nop(1)
    e("global_load_lds_dwordx4 v%d, %s nt" % (V_WO0, sp(S_A)))
    e("s_add_u32 m0, s%d, %d" % (S_T2, LDS_W + 1024))
    g.nop(1)
    e("global_load_lds_dwordx4 v%d, %s nt" % (V_WO1, sp(S_A)))
    e("s_lshl_b32 s%d, s%d, 10" % (S_T2, S_W))
    e("s_add_u32 m0, s%d, %d" % (S_T2, LDS_W + 16384))
    g.nop(1)
    e("global_load_lds_dwordx4 v%d, %s nt" % (V_W2O, sp(S_B)))
    e("s_mov_b32 s%d, %d" % (S_CNT, SPIN))
    e("s_waitcnt vmcnt(3)")
    lp = g.newlabel("qpoll"); dn = g.newlabel("qdone")
    g.lab(lp)
    e("v_cmp_ne_u32 vcc, s%d, v%d" % (S_TAG, V_R + 3))
    e("s_cbranch_vccz %s" % dn)
    e("global_load_dwordx4 %s, v%d, %s sc1" % (vr(V_R, 4), V_AQ, sp(S_WS)))
    e("s_sub_u32 s%d, s%d, 1" % (S_CNT, S_CNT))
    e("s_cmp_lg_u32 s%d, 0" % S_CNT)
    e("s_waitcnt vmcnt(0)")
    e("s_cbranch_scc1 %s" % lp)
    g.lab(dn)
    g.stamp(8)
    unpack4(g, V_R, V_D)
    rows_reduce4(g, V_D)
    e("v_cvt_pk_bf16_f32 v%d, v%d, v%d" % (V_D, V_D, V_D))
    e("ds_write_b16 v%d, v%d offset:%d" % (V_AQW, V_D, LDS_Q))
    e("s_waitcnt lgkmcnt(0)")
    e("s_barrier")
    g.stamp(9)
    e("ds_read_b128 %s, v%d offset:%d" % (vr(V_QB, 4), V_AQB, LDS_Q))
    e("v_mov_b32 v%d, %d" % (t, LDS_MODE))
    e("ds_read_b32 v%d, v%d" % (t + 1, t))
    for st in range(4):
        for hf in range(2):
            e("ds_read_b64_tr_b16 %s, v%d offset:%d" % (vr(V_VT + 4 * st + 2 * hf, 2), V_A2, st * 8192 + hf * 256))
    e("s_waitcnt lgkmcnt(8)")
    for i in range(4):
        e("v_mfma_f32_16x16x32_bf16 %s, %s, %s, 0" % (vr(V_D + 4 * i, 4), vr(V_KD + 4 * i, 4), vr(V_QB, 4)))
    e("v_readfirstlane_b32 s%d, v%d" % (S_MODE, t + 1))
    g.nop(7)
    for i in range(4):
        e("v_add_f32_dpp v%d, v%d, v%d row_shl:4 row_mask:0xf bank_mask:0xf bound_ctrl:0" % (V_S + i, V_D + 4 * i + 1, V_D + 4 * i))
    for i in range(4):
        e("v_add_f32_dpp v%d, v%d, v%d row_shl:8 row_mask:0xf bank_mask:0xf bound_ctrl:0" % (V_S + i, V_D + 4 * i + 2, V_S + i))
    for i in range(4):
        e("v_add_f32_dpp v%d, v%d, v%d row_shl:12 row_mask:0xf bank_mask:0xf bound_ctrl:0" % (V_S + i, V_D + 4 * i + 3, V_S + i))
    e("v_cvt_pk_bf16_f32 v%d, v%d, v%d" % (V_D, V_S, V_S + 1))
    e("v_cvt_pk_bf16_f32 v%d, v%d, v%d" % (V_D + 1, V_S + 2, V_S + 3))
    for j in range(2):
        e("v_lshlrev_b32 v%d, 16, v%d" % (V_S + 2 * j, V_D + j))
        e("v_and_b32 v%d, s%d, v%d" % (V_S + 2 * j + 1, S_HI, V_D + j))
    for j in range(4):
        e("v_mul_f32 v%d, s%d, v%d" % (V_S + j, S_SCALE, V_S + j))
    e("v_cvt_pk_bf16_f32 v%d, v%d, v%d" % (V_D, V_S, V_S + 1))
    e("v_cvt_pk_bf16_f32 v%d, v%d, v%d" % (V_D + 1, V_S + 2, V_S + 3))
    for j in range(2):
        e("v_lshlrev_b32 v%d, 16, v%d" % (V_S + 2 * j, V_D + j))
        e("v_and_b32 v%d, s%d, v%d" % (V_S + 2 * j + 1, S_HI, V_D + j))
    e("v_max3_f32 v%d, v%d, v%d, v%d" % (V_D + 2, V_S, V_S + 1, V_S + 2))
    e("v_max_f32 v%d, v%d, v%d" % (V_D + 2, V_D + 2, V_S + 3))
    bfly_rows(g, V_D + 2, V_D + 3, "max_f32")
    e("s_mov_b64 exec, 15")
    e("ds_write_b32 v%d, v%d offset:%d" % (V_A5, V_D + 2, LDS_MX))
    e("s_mov_b64 exec, -1")
    e("s_waitcnt lgkmcnt(0)")
    e("s_barrier")
    e("ds_read_b128 %s, v%d offset:%d" % (vr(V_D + 4, 4), V_A6, LDS_MX))
    e("ds_read_b128 %s, v%d offset:%d" % (vr(V_D + 8, 4), V_A6, LDS_MX + 16))
    e("s_waitcnt lgkmcnt(0)")
    e("v_max3_f32 v%d, v%d, v%d, v%d" % (V_D + 2, V_D + 4, V_D + 5, V_D + 6))
    e("v_max3_f32 v%d, v%d, v%d, v%d" % (V_D + 3, V_D + 7, V_D + 8, V_D + 9))
    e("v_max3_f32 v%d, v%d, v%d, v%d" % (V_D + 2, V_D + 2, V_D + 10, V_D + 11))
    e("v_max_f32 v%d, v%d, v%d" % (V_R, V_D + 2, V_D + 3))
    for j in range(4):
        e("v_sub_f32 v%d, v%d, v%d" % (V_S + j, V_S + j, V_R))
    for j in range(4):
        e("v_mul_f32 v%d, s%d, v%d" % (V_S + j, S_L2E, V_S + j))
    for j in range(4):
        e("v_exp_f32 v%d, v%d" % (V_S + j, V_S + j))
    g.nop(1)
    e("v_cvt_pk_bf16_f32 v%d, v%d, v%d" % (V_D, V_S, V_S + 1))
    e("v_cvt_pk_bf16_f32 v%d, v%d, v%d" % (V_D + 1, V_S + 2, V_S + 3))
    e("s_mov_b32 exec_lo, 0x000f000f")
    e("s_mov_b32 exec_hi, 0x000f000f")
    e("ds_write_b64 v%d, %s offset:%d" % (V_A4, vr(V_D, 2), LDS_P))
    e("s_mov_b64 exec, -1")
    e("s_waitcnt lgkmcnt(0)")
    e("s_barrier")
    for st in range(4):
        e("ds_read_b128 %s, v%d offset:%d" % (vr(PB[st], 4), V_A3, LDS_P + 64 * st))
    e("v_mov_b32 v%d, 0" % (V_R + 2))
    e("v_mov_b32 v%d, s%d" % (V_R + 3, S_TAG))
    e("v_mov_b32 v%d, s%d" % (V_D + 3, S_TAG))
    for st in range(4):
        e("s_waitcnt lgkmcnt(%d)" % (3 - st))
        cin = "0" if st == 0 else vr(V_O, 4)
        cin2 = "0" if st == 0 else vr(V_LS, 4)
        e("v_mfma_f32_16x16x32_bf16 %s, %s, %s, %s" % (vr(V_O, 4), vr(V_VT + 4 * st, 4), vr(PB[st], 4), cin))
        e("v_mfma_f32_16x16x32_bf16 %s, %s, %s, %s" % (vr(V_LS, 4), vr(V_ONE, 4), vr(PB[st], 4), cin2))
    g.nop(9)
    pack4(g, V_O, V_D)
    e("v_mov_b32 v%d, v%d" % (V_R + 1, V_LS))
    for j in range(3):
        e("v_cndmask_b32 v%d, v%d, v%d, %s" % (V_D + j, V_D + j, V_R + j, sp(S_MASK)))
    e("s_mov_b32 exec_lo, 0x00ff00ff")
    e("s_mov_b32 exec_hi, 0x00ff00ff")
    gl = g.newlabel("s2glob"); jn = g.newlabel("s2join")
    e("s_cmp_eq_u32 s%d, 1" % S_MODE)
    e("s_cbranch_scc0 %s" % gl)
    e("global_store_dwordx4 v%d, %s, %s" % (V_AS2, vr(V_D, 4), sp(S_WS)))
    e("s_branch %s" % jn)
    g.lab(gl)
    e("global_store_dwordx4 v%d, %s, %s sc1" % (V_AS2, vr(V_D, 4), sp(S_WS)))
    g.lab(jn)
    e("s_mov_b64 exec, -1")
    g.stamp(10)
    e("s_waitcnt vmcnt(1)")
    e("s_barrier")
    g.stamp(11)
    for tau in range(4):
        for hf in range(2):
            e("ds_read_b64_tr_b16 %s, v%d offset:%d" % (vr(V_KD + 4 * tau + 2 * hf, 2), V_AW1 if tau >= 2 else V_AW0, hf * 4096 + (tau & 1) * 8))
    e("s_mov_b32 s%d, 0xaaaaaaaa" % S_MASK)
    e("s_mov_b32 s%d, 0xaaaaaaaa" % (S_MASK + 1))
    e("s_mov_b32 s%d, 0xcccccccc" % S_MASK2)
    e("s_mov_b32 s%d, 0xcccccccc" % (S_MASK2 + 1))
    e("v_mov_b32 v%d, s%d" % (V_R + 3, S_TAG))
    e("s_waitcnt lgkmcnt(0)")
    e("s_barrier")
    g.stamp(12)
    e("ds_read_b128 %s, v%d offset:%d" % (vr(V_QB, 4), V_AAV, LDS_AV))
    e("s_waitcnt lgkmcnt(0)")
    for tau in range(4):
        e("v_mfma_f32_16x16x32_bf16 %s, %s, %s, 0" % (vr(V_D + 4 * tau, 4), vr(V_KD + 4 * tau, 4), vr(V_QB, 4)))
    g.nop(8)
    for j in range(4):
        e("v_cndmask_b32 v%d, v%d, v%d, %s" % (V_D + j, V_D + j, V_D + 4 + j, sp(S_MASK)))
        e("v_cndmask_b32 v%d, v%d, v%d, %s" % (V_D + 8 + j, V_D + 8 + j, V_D + 12 + j, sp(S_MASK)))
    for j in range(4):
        e("v_cndmask_b32 v%d, v%d, v%d, %s" % (V_D + j, V_D + j, V_D + 8 + j, sp(S_MASK2)))
    pack4(g, V_D, V_R)
    e("s_mov_b32 exec_lo, 0x000f000f")
    e("s_mov_b32 exec_hi, 0x000f000f")
    e("global_store_dwordx4 v%d, %s, %s sc1" % (V_AS3, vr(V_R, 4), sp(S_WS)))
    e("s_mov_b64 exec, -1")
    g.stamp(13)
    e("s_cmp_ge_u32 s2, 32")
    e("s_cbranch_scc1 L_fin")
    if S3SLEEP:
        e("s_sleep %d" % S3SLEEP)
    e("s_mov_b32 s%d, %d" % (S_CNT, SPIN))
    lp = g.newlabel("opoll"); dn = g.newlabel("odone")
    g.lab(lp)
    e("global_load_dwordx4 %s, v%d, %s sc1" % (vr(V_D, 4), V_AI, sp(S_WS)))
    e("global_load_dwordx4 %s, v%d, %s offset:1024 sc1" % (vr(V_D + 4, 4), V_AI, sp(S_WS)))
    e("s_waitcnt vmcnt(0)")
    e("v_cmp_ne_u32 vcc, s%d, v%d" % (S_TAG, V_D + 3))
    e("v_cmp_ne_u32 %s, s%d, v%d" % (sp(S_MASK), S_TAG, V_D + 7))
    e("s_or_b64 vcc, vcc, %s" % sp(S_MASK))
    e("s_cbranch_scc0 %s" % dn)
    spin_tail(lp)
    g.lab(dn)
    g.stamp(14)
    unpack4(g, V_D, V_D + 8)
    unpack4(g, V_D + 4, V_D + 12)
    for j in range(4):
        e("v_add_f32 v%d, v%d, v%d" % (V_D + 8 + j, V_D + 8 + j, V_D + 12 + j))
    rows_reduce4(g, V_D + 8)
    g.nop(2)
    e("v_add_f32_dpp v%d, v%d, v%d row_ror:8 row_mask:0xf bank_mask:0xf" % (V_D + 8, V_D + 8, V_D + 8))
    g.nop(2)
    e("v_add_f32_dpp v%d, v%d, v%d row_ror:4 row_mask:0xf bank_mask:0xf" % (V_D + 8, V_D + 8, V_D + 8))
    e("s_mov_b32 exec_lo, 0x000f000f")
    e("s_mov_b32 exec_hi, 0x000f000f")
    e("ds_write_b32 v%d, v%d offset:%d" % (V_AFR, V_D + 8, LDS_FR))
    e("s_mov_b64 exec, -1")
    e("s_waitcnt lgkmcnt(0)")
    e("s_barrier")
    e("s_branch L_fin")

    g.lab("L_sync")
    e("s_and_b32 s%d, s%d, 3" % (S_T0, S_C))
    e("s_lshr_b32 s%d, s%d, 2" % (S_T1, S_C))
    e("s_lshl_b32 s%d, s%d, 13" % (S_T2, S_G))
    e("s_lshl_b32 s%d, s%d, 11" % (S_T3, S_T0))
    e("s_add_u32 s%d, s%d, s%d" % (S_T2, S_T2, S_T3))
    e("s_lshl_b32 s%d, s%d, 8" % (S_T3, S_T1))
    e("s_add_u32 s%d, s%d, s%d" % (S_T2, S_T2, S_T3))
    e("s_add_u32 s%d, s%d, %d" % (S_T2, S_T2, WS_QR))
    e("v_add_u32 v12, s%d, v3" % S_T2)
    e("s_mul_i32 s%d, s%d, 7168" % (S_T2, S_G))
    e("s_lshl_b32 s%d, s%d, 8" % (S_T3, S_C))
    e("s_add_u32 s%d, s%d, s%d" % (S_T2, S_T2, S_T3))
    e("s_add_u32 s%d, s%d, %d" % (S_T2, S_T2, WS_GP))
    e("v_add_u32 v13, s%d, v3" % S_T2)
    e("s_lshl_b32 s%d, s%d, 9" % (S_T2, S_G))
    e("s_add_u32 s%d, s%d, %d" % (S_T2, S_T2, WS_XT))
    e("v_and_b32 v14, 31, v1")
    e("v_lshlrev_b32 v14, 4, v14")
    e("v_add_u32 v14, s%d, v14" % S_T2)
    e("s_lshl_b32 s%d, s%d, 4" % (S_T3, S_C))
    e("s_add_u32 s%d, s%d, s%d" % (S_T2, S_T2, S_T3))
    e("v_mov_b32 v15, s%d" % S_T2)
    e("v_bfe_u32 v16, v1, 3, 1")
    e("v_lshlrev_b32 v16, 2, v16")
    e("v_and_b32 v17, 3, v1")
    e("v_add_u32 v16, v16, v17")
    e("v_mul_u32_u24 v16, 7168, v16")
    e("v_bfe_u32 v17, v1, 2, 1")
    e("v_lshl_add_u32 v16, v17, 4, v16")
    e("s_lshl_b32 s%d, s%d, 5" % (S_T2, S_J))
    e("s_add_u32 s%d, s%d, %d" % (S_T2, S_T2, WS_GP))
    e("v_add_u32 v16, s%d, v16" % S_T2)
    e("s_lshl_b32 s%d, s%d, 17" % (S_T2, S_G))
    e("s_lshl_b32 s%d, s%d, 12" % (S_T3, S_C))
    e("s_add_u32 s%d, s%d, s%d" % (S_T2, S_T2, S_T3))
    e("s_add_u32 s%d, s%d, %d" % (S_T2, S_T2, WS_S2))
    e("v_add_u32 v18, s%d, v3" % S_T2)
    e("s_and_b32 s%d, s2, 31" % S_T2)
    e("s_lshl_b32 s%d, s%d, 5" % (S_T2, S_T2))
    e("v_and_b32 v23, 15, v1")
    e("v_lshlrev_b32 v23, 1, v23")
    e("v_add_u32 v23, s%d, v23" % S_T2)
    e("v_and_b32 v19, 3, v1")
    e("v_lshlrev_b32 v19, 3, v19")
    e("v_lshrrev_b32 v20, 4, v1")
    e("v_lshl_add_u32 v19, v20, 1, v19")
    for i in range(4):
        e("v_mov_b32 v%d, 0" % (8 + i))
    e("v_add_u32 v21, %d, v3" % LDS_AV)
    e("s_mov_b64 exec, 15")
    e("ds_write_b128 v21, v[8:11]")
    e("s_mov_b64 exec, -1")
    e("s_getreg_b32 s%d, hwreg(HW_REG_XCC_ID, 0, 4)" % S_XCC)
    e("s_waitcnt lgkmcnt(0)")
    g.stamp(1)
    e("global_load_dwordx4 v[72:75], v3, %s" % sp(S_X))
    e("v_mov_b32 v26, %d" % WS_E)
    e("global_load_dword v25, v26, %s sc1" % sp(S_WS))
    e("global_load_ushort v24, v23, %s" % sp(S_X))
    e("s_barrier")
    e("s_barrier")
    e("s_waitcnt vmcnt(2)")
    g.stamp(2)
    layernorm(g, 72, 76, 84, 92, 27, 3)
    e("s_waitcnt vmcnt(1)")
    e("v_add_u32 v25, 1, v25")
    e("v_mov_b32 v26, %d" % LDS_MODE)
    e("ds_write_b32 v26, v25 offset:4")
    e("v_readfirstlane_b32 s%d, v25" % S_TAG)
    e("s_waitcnt lgkmcnt(0)")
    e("s_barrier")
    e("v_mov_b32 v8, s%d" % S_XCC)
    e("v_mov_b32 v11, s%d" % S_TAG)
    e("s_mov_b64 exec, 1")
    e("global_store_dwordx4 v15, v[8:11], %s sc1" % sp(S_WS))
    e("s_not_b32 s%d, s%d" % (S_T2, S_TAG))
    e("v_mov_b32 v11, s%d" % S_T2)
    e("s_mov_b64 exec, 0xffff")
    e("v_mov_b32 v11, s%d" % S_T2)
    e("global_store_dwordx4 v12, v[8:11], %s sc1" % sp(S_WS))
    sk = g.newlabel("sk")
    e("s_cmp_eq_u32 s%d, 0" % S_MLP)
    e("s_cbranch_scc1 %s" % sk)
    e("global_store_dwordx4 v13, v[8:11], %s sc1" % sp(S_WS))
    g.lab(sk)
    e("s_mov_b64 exec, -1")
    e("v_mov_b32 v39, s%d" % S_TAG)
    e("s_barrier")
    def sum8(base, addr_store):
        e("s_mov_b64 exec, 0xffff")
        for wv in range(8):
            e("ds_read_b128 %s, v3 offset:%d" % (vr(40 + 4 * wv, 4), base + wv * 256))
        e("s_waitcnt lgkmcnt(4)")
        for j in range(4):
            e("v_add_f32 v%d, v%d, v%d" % (40 + j, 40 + j, 44 + j))
            e("v_add_f32 v%d, v%d, v%d" % (48 + j, 48 + j, 52 + j))
        e("s_waitcnt lgkmcnt(0)")
        for j in range(4):
            e("v_add_f32 v%d, v%d, v%d" % (56 + j, 56 + j, 60 + j))
            e("v_add_f32 v%d, v%d, v%d" % (64 + j, 64 + j, 68 + j))
        for j in range(4):
            e("v_add_f32 v%d, v%d, v%d" % (40 + j, 40 + j, 48 + j))
            e("v_add_f32 v%d, v%d, v%d" % (56 + j, 56 + j, 64 + j))
        for j in range(4):
            e("v_add_f32 v%d, v%d, v%d" % (40 + j, 40 + j, 56 + j))
        pack4(g, 40, 36)
        e("global_store_dwordx4 v%d, v[36:39], %s sc1" % (addr_store, sp(S_WS)))
        e("s_mov_b64 exec, -1")
    sum8(LDS_R1, 12)
    g.stamp(3)
    e("s_barrier")
    nm = g.newlabel("nomlp")
    e("s_cmp_eq_u32 s%d, 0" % S_MLP)
    e("s_cbranch_scc1 %s" % nm)
    sum8(LDS_R1M, 13)
    g.lab(nm)
    g.stamp(4)
    e("s_barrier")
    g.stamp(5)
    e("global_load_dwordx4 v[28:31], v14, %s sc1" % sp(S_WS))
    e("global_load_dwordx4 v[32:35], v16, %s sc1" % sp(S_WS))
    for i in range(4):
        e("global_load_dwordx4 %s, v18, %s offset:%d sc1" % (vr(40 + 4 * i, 4), sp(S_WS), 1024 * i))
    e("s_mov_b32 s%d, %d" % (S_CNT, SPIN))
    e("s_waitcnt vmcnt(5)")
    lp = g.newlabel("xpoll"); dn = g.newlabel("xdone")
    g.lab(lp)
    e("v_cmp_ne_u32 vcc, s%d, v31" % S_TAG)
    e("s_cbranch_vccz %s" % dn)
    e("global_load_dwordx4 v[28:31], v14, %s sc1" % sp(S_WS))
    e("s_sub_u32 s%d, s%d, 1" % (S_CNT, S_CNT))
    e("s_cmp_lg_u32 s%d, 0" % S_CNT)
    e("s_waitcnt vmcnt(0)")
    e("s_cbranch_scc1 %s" % lp)
    g.lab(dn)
    e("v_cmp_ne_u32 vcc, s%d, v28" % S_XCC)
    e("s_cmp_eq_u64 vcc, 0")
    e("s_cselect_b32 s%d, 1, 0" % S_MODE)
    if o.get("forceglobal"):
        e("s_mov_b32 s%d, 0" % S_MODE)
    e("v_mov_b32 v25, s%d" % S_MODE)
    e("v_mov_b32 v26, %d" % LDS_MODE)
    e("ds_write_b32 v26, v25")
    e("s_waitcnt lgkmcnt(0)")
    g.stamp(6)
    e("s_barrier")
    e("s_barrier")
    e("s_barrier")
    g.stamp(7)
    nm = g.newlabel("nomlp")
    e("s_cmp_eq_u32 s%d, 0" % S_MLP)
    e("s_cbranch_scc1 %s" % nm)
    e("s_mov_b64 exec, 0xffff")
    e("s_mov_b32 s%d, %d" % (S_CNT, SPIN))
    e("s_waitcnt vmcnt(0)")
    lp = g.newlabel("gpoll"); dn = g.newlabel("gdone")
    g.lab(lp)
    e("v_cmp_ne_u32 vcc, s%d, v35" % S_TAG)
    e("s_cbranch_vccz %s" % dn)
    e("global_load_dwordx4 v[32:35], v16, %s sc1" % sp(S_WS))
    e("s_sub_u32 s%d, s%d, 1" % (S_CNT, S_CNT))
    e("s_cmp_lg_u32 s%d, 0" % S_CNT)
    e("s_waitcnt vmcnt(0)")
    e("s_cbranch_scc1 %s" % lp)
    g.lab(dn)
    unpack4(g, 32, 28)
    g.nop(1)
    for qp in ("[1,0,3,2]", "[2,3,0,1]"):
        for j in range(4):
            e("v_add_f32_dpp v%d, v%d, v%d quad_perm:%s row_mask:0xf bank_mask:0xf" % (28 + j, 28 + j, 28 + j, qp))
    for j in range(4):
        bf16r(g, 28 + j, 28 + j)
    g.nop(2)
    for j in range(4):
        e("v_mov_b32_dpp v%d, v%d row_shl:8 row_mask:0xf bank_mask:0xf bound_ctrl:0" % (32 + j, 28 + j))
    for j in range(4):
        e("v_mul_f32 v%d, s%d, v%d" % (56 + j, S_L2E, 28 + j))
    for j in range(4):
        e("v_exp_f32 v%d, -v%d" % (56 + j, 56 + j))
    g.nop(1)
    for j in range(4):
        e("v_add_f32 v%d, 1.0, v%d" % (56 + j, 56 + j))
    for j in range(4):
        e("v_rcp_f32 v%d, v%d" % (60 + j, 56 + j))
    g.nop(1)
    for j in range(4):
        e("v_mul_f32 v%d, v%d, v%d" % (64 + j, 28 + j, 60 + j))
    for j in range(4):
        e("v_fma_f32 v%d, -v%d, v%d, v%d" % (68 + j, 64 + j, 56 + j, 28 + j))
    for j in range(4):
        e("v_fmac_f32 v%d, v%d, v%d" % (64 + j, 68 + j, 60 + j))
    for j in range(4):
        bf16r(g, 64 + j, 64 + j)
    for j in range(4):
        e("v_mul_f32 v%d, v%d, v%d" % (64 + j, 64 + j, 32 + j))
    e("v_cvt_pk_bf16_f32 v68, v64, v65")
    e("v_cvt_pk_bf16_f32 v69, v66, v67")
    e("v_bfe_u32 v27, v1, 2, 1")
    e("v_lshlrev_b32 v27, 3, v27")
    e("s_mov_b64 exec, 0x11")
    e("ds_write_b64 v27, v[68:69] offset:%d" % (LDS_AV + 32))
    e("s_mov_b64 exec, -1")
    g.lab(nm)
    g.stamp(8)
    e("s_barrier")
    g.stamp(9)
    e("s_mov_b32 s%d, %d" % (S_CNT, SPIN))
    lp = g.newlabel("s2poll"); dn = g.newlabel("s2done")
    g.lab(lp)
    for i in range(4):
        e("global_load_dwordx4 %s, v18, %s offset:%d sc1" % (vr(40 + 4 * i, 4), sp(S_WS), 1024 * i))
    e("s_waitcnt vmcnt(0)")
    e("v_cmp_ne_u32 vcc, s%d, v43" % S_TAG)
    e("v_cmp_ne_u32 %s, s%d, v47" % (sp(S_MASK), S_TAG))
    e("v_cmp_ne_u32 %s, s%d, v51" % (sp(S_MASK2), S_TAG))
    e("v_cmp_ne_u32 %s, s%d, v55" % (sp(S_A), S_TAG))
    e("s_or_b64 vcc, vcc, %s" % sp(S_MASK))
    e("s_or_b64 %s, %s, %s" % (sp(S_MASK2), sp(S_MASK2), sp(S_A)))
    e("s_or_b64 vcc, vcc, %s" % sp(S_MASK2))
    e("s_cbranch_scc0 %s" % dn)
    spin_tail(lp)
    g.lab(dn)
    g.stamp(10)
    for i in range(4):
        e("v_mov_b32_dpp v%d, v%d row_shl:4 row_mask:0xf bank_mask:0xf bound_ctrl:0" % (56 + i, 40 + 4 * i))
    for i in range(4):
        e("v_mov_b32_dpp v%d, v%d row_shl:4 row_mask:0xf bank_mask:0xf bound_ctrl:0" % (60 + i, 41 + 4 * i))
    e("v_max3_f32 v28, v56, v57, v58")
    e("v_max_f32 v28, v28, v59")
    g.nop(2)
    e("v_max_f32_dpp v28, v28, v28 row_ror:8 row_mask:0xf bank_mask:0xf")
    bfly_rows(g, 28, 29, "max_f32")
    for i in range(4):
        unpack4(g, 40 + 4 * i, 64 + 4 * i)
    for i in range(4):
        e("v_sub_f32 v%d, v%d, v28" % (56 + i, 56 + i))
    for i in range(4):
        e("v_mul_f32 v%d, s%d, v%d" % (56 + i, S_L2E, 56 + i))
    for i in range(4):
        e("v_exp_f32 v%d, v%d" % (56 + i, 56 + i))
    g.nop(1)
    for j in range(4):
        e("v_mul_f32 v%d, v56, v%d" % (40 + j, 64 + j))
    e("v_mul_f32 v44, v56, v60")
    for i in range(1, 4):
        for j in range(4):
            e("v_fmac_f32 v%d, v%d, v%d" % (40 + j, 56 + i, 64 + 4 * i + j))
        e("v_fmac_f32 v44, v%d, v%d" % (56 + i, 60 + i))
    g.nop(2)
    e("v_add_f32_dpp v44, v44, v44 row_ror:8 row_mask:0xf bank_mask:0xf")
    rows_reduce4(g, 40)
    bfly_rows(g, 44, 45, "add_f32")
    e("v_add_f32_dpp v40, v40, v40 row_ror:8 row_mask:0xf bank_mask:0xf")
    e("v_rcp_f32 v45, v44")
    g.nop(1)
    e("v_mul_f32 v40, v40, v45")
    e("v_cvt_pk_bf16_f32 v40, v40, v40")
    e("s_mov_b32 exec_lo, 0x000f000f")
    e("s_mov_b32 exec_hi, 0x000f000f")
    e("ds_write_b16 v19, v40 offset:%d" % LDS_AV)
    e("s_mov_b64 exec, -1")
    e("s_waitcnt lgkmcnt(0)")
    g.stamp(11)
    e("s_barrier")
    e("s_cmp_ge_u32 s2, 32")
    e("s_cbranch_scc1 L_fin")
    e("s_barrier")
    g.stamp(12)
    e("v_and_b32 v26, 15, v1")
    e("v_lshlrev_b32 v26, 2, v26")
    for wv in range(8):
        e("ds_read_b32 v%d, v26 offset:%d" % (40 + wv, LDS_FR + wv * 64))
    e("v_lshlrev_b32 v24, 16, v24")
    e("s_waitcnt lgkmcnt(0)")
    e("v_add_f32 v40, v40, v41")
    e("v_add_f32 v42, v42, v43")
    e("v_add_f32 v44, v44, v45")
    e("v_add_f32 v46, v46, v47")
    e("v_add_f32 v40, v40, v42")
    e("v_add_f32 v44, v44, v46")
    e("v_add_f32 v40, v40, v44")
    e("v_add_f32 v40, v40, v24")
    e("v_cvt_pk_bf16_f32 v40, v40, v40")
    e("s_mov_b64 exec, 0xffff")
    e("global_store_short v23, v40, %s" % sp(S_OUT))
    ne = g.newlabel("noepoch")
    e("s_cmp_lg_u32 s2, 0")
    e("s_cbranch_scc1 %s" % ne)
    e("s_mov_b64 exec, 1")
    e("v_mov_b32 v26, %d" % WS_E)
    e("v_mov_b32 v27, s%d" % S_TAG)
    e("global_store_dword v26, v27, %s sc1" % sp(S_WS))
    g.lab(ne)
    e("s_mov_b64 exec, -1")
    g.stamp(13)
    g.lab("L_fin")
    if stamps and o.get("dbgstamps"):
        sk2 = g.newlabel("nodbg")
        e("s_cmp_lg_u32 s2, 0")
        e("s_cbranch_scc1 %s" % sk2)
        e("s_cmp_lg_u32 s%d, %d" % (S_W, o.get("dbgwave", 8)))
        e("s_cbranch_scc1 %s" % sk2)
        e("s_waitcnt lgkmcnt(0)")
        e("s_mov_b64 exec, 1")
        e("v_mov_b32 v2, 0")
        for i in range(16):
            e("s_sub_u32 s%d, s%d, s40" % (S_T2, 40 + 2 * i))
            e("v_mov_b32 v4, s%d" % S_T2)
            e("global_store_dword v2, v4, %s offset:%d sc1" % (sp(S_DBG), 4 * i))
            e("s_nop 1")
        g.lab(sk2)
    elif stamps:
        e("s_waitcnt lgkmcnt(0)")
        e("s_mul_i32 s%d, s2, 9" % S_T2)
        e("s_add_u32 s%d, s%d, s%d" % (S_T2, S_T2, S_W))
        e("s_lshl_b32 s%d, s%d, 7" % (S_T2, S_T2))
        e("s_add_u32 s%d, s%d, %d" % (S_T2, S_T2, WS_STAMP))
        e("v_mov_b32 v2, s%d" % S_T2)
        e("s_mov_b64 exec, 1")
        for i in range(16):
            e("v_mov_b32 v4, s%d" % (40 + 2 * i))
            e("v_mov_b32 v5, s%d" % (41 + 2 * i))
            e("global_store_dwordx2 v2, v[4:5], %s offset:%d" % (sp(S_WS), 8 * i))
            e("s_nop 1")
    g.lab("L_end")
    e("s_endpgm")
    tail = [
        '.section .rodata,"a"',
        ".p2align 6",
        ".amdhsa_kernel %s" % K,
        "  .amdhsa_next_free_vgpr %d" % NV,
        "  .amdhsa_next_free_sgpr 102",
        "  .amdhsa_accum_offset %d" % NV,
        "  .amdhsa_group_segment_fixed_size 0",
        "  .amdhsa_kernarg_size 96",
        "  .amdhsa_user_sgpr_count 2",
        "  .amdhsa_user_sgpr_kernarg_segment_ptr 1",
        "  .amdhsa_system_sgpr_workgroup_id_x 1",
        ".end_amdhsa_kernel",
    ]
    return "\n".join(out + g.L + tail) + "\n"

if __name__ == "__main__":
    stamps = "--stamps" in sys.argv
    outp = [a for a in sys.argv[1:] if not a.startswith("--")]
    opts = {}
    for a in sys.argv[1:]:
        if a.startswith("--o:"):
            kv = a[4:].split("=")
            opts[kv[0]] = int(kv[1]) if len(kv) > 1 else 1
    txt = build(stamps, opts)
    open(outp[0], "w").write(txt)
    print("wrote", outp[0], len(txt.split("\n")), "lines")
```

```python
import sys
sys.path.insert(0, "dev")
from gen2 import G, sp, vr, wave_reduce, gemv_unit, reduce_scatter8, rows_reduce4, bfly_rows, bf16r, pack4, unpack4
from gen2 import (S_X, S_K, S_V, S_WQ, S_WO, S_BX, S_W1, S_W3, S_W2, S_OUT, S_DBG, S_WS, S_G, S_C, S_W,
                  S_T0, S_T1, S_T2, S_T3, S_CNT, S_TAG, S_MODE, S_J, S_XCC, S_A, S_B, S_C2, S_D, S_E, S_F,
                  S_MASK, S_MASK2, S_U0, S_U1, S_U2, S_U3, S_HI, S_L2E, S_SCALE, S_MLP,
                  S_P0, S_P1, S_P2, S_Q1, S_Q2, S_M24)
from gen2 import WS_E, WS_XT, WS_QR, WS_GP, WS_S2, WS_S3, S3_STRIDE, WS_STAMP, NAME

L_WQ = 0
L_W13 = 16384
L_K = 32768
L_V = 65536
L_W = 98304
L_MISC = 122880
M_XN = 0
M_R1 = 1024
M_R1M = 3072
M_Q = 5120
M_MX = 6144
M_P = 6272
P_STRIDE = 272
M_AV = M_P + 4 * P_STRIDE
M_FR = M_AV + 64
M_FLG = M_FR + 512
M_PROG = M_FLG + 128
LDS_TOTAL = L_MISC + M_PROG + 256
F_TAG, F_XN, F_MODE, F_R1, F_R1M, F_Q, F_MX, F_P, F_AV, F_FR = 0, 4, 8, 16, 24, 32, 40, 48, 56, 64
NLOADS = 120

ORDERS = [["wq", "w13", "k", "v", "wo", "w2"], ["wq", "k", "w13", "v", "wo", "w2"], ["wq", "w13", "k", "w2", "v", "wo"],
          ["wq", "k", "w13", "w2", "v", "wo"], ["wq", "w13", "k", "wo", "v", "w2"]]

def layernorm(g, V_X, f, a, V_D):
    e = g.e
    for j in range(4):
        e("v_lshlrev_b32 v%d, 16, v%d" % (f + 2 * j, V_X + j))
        e("v_and_b32 v%d, s%d, v%d" % (f + 2 * j + 1, S_HI, V_X + j))
    e("v_add_f32 v%d, v%d, v%d" % (a, f, f + 1))
    e("v_add_f32 v%d, v%d, v%d" % (a + 1, f + 2, f + 3))
    e("v_add_f32 v%d, v%d, v%d" % (a + 2, f + 4, f + 5))
    e("v_add_f32 v%d, v%d, v%d" % (a + 3, f + 6, f + 7))
    e("v_add_f32 v%d, v%d, v%d" % (a, a, a + 1))
    e("v_add_f32 v%d, v%d, v%d" % (a + 2, a + 2, a + 3))
    e("v_add_f32 v%d, v%d, v%d" % (a, a, a + 2))
    g.nop(2)
    wave_reduce(g, "add_f32", [a])
    g.nop(1)
    e("v_readlane_b32 s%d, v%d, 63" % (S_T2, a))
    g.nop(3)
    e("v_mov_b32 v%d, s%d" % (a + 4, S_T2))
    e("v_mul_f32 v%d, 0x3b000000, v%d" % (a + 4, a + 4))
    for j in range(8):
        e("v_sub_f32 v%d, v%d, v%d" % (V_D + j, f + j, a + 4))
    e("v_mul_f32 v%d, v%d, v%d" % (a, V_D, V_D))
    for j in range(1, 8):
        e("v_fmac_f32 v%d, v%d, v%d" % (a, V_D + j, V_D + j))
    g.nop(2)
    wave_reduce(g, "add_f32", [a])
    g.nop(1)
    e("v_readlane_b32 s%d, v%d, 63" % (S_T2, a))
    g.nop(3)
    e("v_mov_b32 v%d, s%d" % (a + 5, S_T2))
    e("v_mul_f32 v%d, 0x3b000000, v%d" % (a + 5, a + 5))
    bf16r(g, a + 4, a + 4)
    bf16r(g, a + 5, a + 5)
    e("v_add_f32 v%d, 0x3727c5ac, v%d" % (a + 5, a + 5))
    bf16r(g, a + 5, a + 5)
    e("v_sqrt_f32 v%d, v%d" % (a + 5, a + 5))
    g.nop(1)
    bf16r(g, a + 5, a + 5)
    e("v_rcp_f32 v%d, v%d" % (a + 6, a + 5))
    for j in range(8):
        e("v_sub_f32 v%d, v%d, v%d" % (f + j, f + j, a + 4))
    for j in range(4):
        e("v_cvt_pk_bf16_f32 v%d, v%d, v%d" % (V_D + j, f + 2 * j, f + 2 * j + 1))
    for j in range(4):
        e("v_lshlrev_b32 v%d, 16, v%d" % (f + 2 * j, V_D + j))
        e("v_and_b32 v%d, s%d, v%d" % (f + 2 * j + 1, S_HI, V_D + j))
    for j in range(8):
        e("v_mul_f32 v%d, v%d, v%d" % (V_D + j, f + j, a + 6))
    for j in range(8):
        e("v_fma_f32 v%d, -v%d, v%d, v%d" % (f + j, V_D + j, a + 5, f + j))
    for j in range(8):
        e("v_fmac_f32 v%d, v%d, v%d" % (V_D + j, f + j, a + 6))
    for j in range(4):
        e("v_cvt_pk_bf16_f32 v%d, v%d, v%d" % (V_X + j, V_D + 2 * j, V_D + 2 * j + 1))

def build(stamps=False, opts=None):
    g = G(stamps, opts)
    o = g.o
    SPIN = 1 << o.get("spin", 16)
    LSPIN = 1 << o.get("lspin", 20)
    S3SLEEP = o.get("s3sleep", 6)
    D = o.get("win", 32)
    THRQ = o.get("thrq", 52)
    THRQ2 = o.get("thrq2", 60)
    THRX = o.get("thrx", 32)
    THRG = o.get("thrg", 80)
    THRS2 = o.get("thrs2", 108)
    LSLEEP = o.get("lsleep", 0)
    ORDER = ORDERS[o.get("order", 0)]
    NL = {"wq": 16, "w13": 16, "k": 32, "v": 32, "wo": 16, "w2": 8}
    OFF = {}
    acc_ = 0
    for sg_ in ORDER:
        OFF[sg_] = acc_; acc_ += NL[sg_]
    THRV = OFF["v"] + 32
    THRW = max(OFF["wo"] + 16, OFF["w2"] + 8)
    K = NAME + "_kernel"
    hdr = open("cdna_kernels/%s.s.ref" % NAME).read().split("\n")
    top = []
    for line in hdr:
        if line.startswith("; Override") or line.startswith("; grid=") or line.startswith("; @launch"):
            continue
        if line.startswith(";"):
            top.append(line)
        else:
            break
    out = top + [
        "; Single persistent launch: 256 workgroups x (8 compute + sync + loader waves). Generated by dev/gen3.py (hand-written generator).",
        "; @launch grid=(256,1,1) block=(640,1,1) lds=%d" % LDS_TOTAL,
        '.amdgcn_target "amdgcn-amd-amdhsa--gfx950"',
        ".text",
        ".globl %s" % K,
        ".p2align 8",
        ".type %s,@function" % K,
        K + ":",
    ]
    e = g.e
    def spin_tail(lp):
        e("s_sub_u32 s%d, s%d, 1" % (S_CNT, S_CNT))
        e("s_cmp_lg_u32 s%d, 0" % S_CNT)
        e("s_cbranch_scc1 %s" % lp)

    def lds_wait(reads, check, name, nflag=None):
        lp = g.newlabel(name); dn = g.newlabel(name + "d")
        if nflag is None or nflag >= len(reads) or o.get("onephase"):
            e("s_mov_b32 s%d, %d" % (S_CNT, LSPIN))
            g.lab(lp)
            for r in reads:
                e(r)
            e("s_waitcnt lgkmcnt(0)")
            for c in check:
                e(c)
            e("s_cbranch_vccz %s" % dn)
            if LSLEEP:
                e("s_sleep %d" % LSLEEP)
            spin_tail(lp)
            g.lab(dn)
            return
        got = g.newlabel(name + "g")
        for r in reads:
            e(r)
        e("s_waitcnt lgkmcnt(0)")
        for c in check:
            e(c)
        e("s_cbranch_vccz %s" % dn)
        e("s_mov_b32 s%d, %d" % (S_CNT, LSPIN))
        g.lab(lp)
        for r in reads[:nflag]:
            e(r)
        e("s_waitcnt lgkmcnt(0)")
        for c in check:
            e(c)
        e("s_cbranch_vccz %s" % got)
        if LSLEEP:
            e("s_sleep %d" % LSLEEP)
        spin_tail(lp)
        g.lab(got)
        for r in reads[nflag:]:
            e(r)
        e("s_waitcnt lgkmcnt(0)")
        g.lab(dn)

    V_MB = 2
    def rd_prog(vt): return "ds_read_b32 v%d, v%d offset:%d" % (vt, V_MB, M_PROG)
    def ck_prog(vt, thr):
        return ["v_cmp_gt_i32 vcc, %s, v%d" % (thr, vt)]
    def rd_flag8(vt, off): return "ds_read_b64 %s, v%d offset:%d" % (vr(vt, 2), V_MB, M_FLG + off)
    def ck_flag8(vt):
        return ["v_and_b32 v%d, v%d, v%d" % (vt, vt, vt + 1), "v_cmp_ne_u32 vcc, s%d, v%d" % (S_ONES, vt)]
    def set_flag8(vone, off):
        e("ds_write_b8 v%d, v%d offset:%d" % (V_FW, vone, M_FLG + off))

    S_ONES = 3
    e("s_cmp_ge_u32 s2, 256")
    e("s_cbranch_scc1 L_end")
    e("s_load_dwordx16 s[4:19], s[0:1], 0")
    e("s_load_dwordx8 s[20:27], s[0:1], 64")
    g.stamp(0)
    e("v_and_b32 v1, 63, v0")
    e("v_lshrrev_b32 v2, 6, v0")
    e("s_and_b32 s%d, s2, 7" % S_G)
    e("s_lshr_b32 s%d, s2, 3" % S_C)
    e("v_readfirstlane_b32 s%d, v2" % S_W)
    e("s_mov_b32 s%d, 0xffff0000" % S_HI)
    e("s_mov_b32 s%d, 0x3fb8aa3b" % S_L2E)
    e("s_mov_b32 s%d, 0x3db504f3" % S_SCALE)
    e("s_mov_b32 s%d, 0x05030201" % S_P0)
    e("s_mov_b32 s%d, 0x06050302" % S_P1)
    e("s_mov_b32 s%d, 0x07060503" % S_P2)
    e("s_mov_b32 s%d, 0x0504030c" % S_Q1)
    e("s_mov_b32 s%d, 0x0403020c" % S_Q2)
    e("s_mov_b32 s%d, 0xffffff00" % S_M24)
    e("s_mov_b32 s%d, 0x01010101" % S_ONES)
    e("s_cmp_lt_u32 s%d, 28" % S_C)
    e("s_cselect_b32 s%d, 1, 0" % S_MLP)
    e("s_mul_i32 s%d, s%d, 28" % (S_J, S_G))
    e("s_add_u32 s%d, s%d, s%d" % (S_J, S_J, S_C))
    e("v_lshlrev_b32 v3, 4, v1")
    e("v_mov_b32 v%d, %d" % (V_MB, L_MISC))
    e("s_cmp_eq_u32 s%d, 8" % S_W)
    e("s_cbranch_scc1 L_sync")
    e("s_cmp_eq_u32 s%d, 9" % S_W)
    e("s_cbranch_scc1 L_loader")

    V_L16 = 3
    V_FW = 4
    V_T = 8
    V_WD = 20
    V_KD = 32
    V_QB = 48
    V_VT = 64
    V_ACC = 80
    V_XA, V_XB, V_XAH, V_XBH = 88, 89, 90, 91
    V_XC, V_XD, V_XCH, V_XDH = 92, 93, 94, 95
    V_D = 96
    V_S = 112
    V_O, V_LS, V_ONE, V_R = 20, 24, 80, 84
    V_A1, V_A3, V_A4, V_A5, V_A6, V_A2 = 116, 117, 118, 119, 120, 121
    V_AQ, V_AQW, V_AQB, V_AS2, V_AS3, V_AW0, V_AW1, V_AAV = 122, 123, 124, 125, 126, 127, 128, 129
    V_AK = 130
    V_AI, V_AFR, V_ARW, V_ONEB = 134, 135, 136, 137
    NV = 140
    t = V_T
    e("v_mov_b32 v%d, 1" % V_ONEB)
    e("v_add_u32 v%d, s%d, v%d" % (V_FW, S_W, V_MB))
    e("s_and_b32 s%d, s%d, 3" % (S_T0, S_C))
    e("s_and_b32 s%d, s%d, 3" % (S_U2, S_G))
    e("s_lshl_b32 s%d, s%d, 10" % (S_T2, S_W))
    e("v_add_u32 v%d, s%d, v%d" % (V_ARW, S_T2, V_L16))
    e("v_and_b32 v%d, 7, v1" % (t + 1))
    e("v_lshlrev_b32 v%d, 5, v%d" % (V_A1, t + 1))
    e("v_bfe_u32 v%d, v1, 3, 3" % (t + 1))
    e("v_lshl_add_u32 v%d, v%d, 2, v%d" % (V_A1, t + 1, V_A1))
    e("s_lshl_b32 s%d, s%d, 8" % (S_T2, S_W))
    e("s_add_u32 s%d, s%d, %d" % (S_T2, S_T2, L_MISC))
    e("v_add_u32 v%d, s%d, v%d" % (V_A1, S_T2, V_A1))
    e("v_and_b32 v%d, 3, v1" % t)
    e("v_lshrrev_b32 v%d, 4, v1" % (t + 1))
    e("v_bfe_u32 v%d, v1, 2, 2" % (t + 2))
    e("v_and_b32 v%d, 15, v1" % (t + 7))
    e("v_lshl_add_u32 v%d, v%d, 3, v%d" % (t + 3, t + 1, t + 2))
    e("v_lshlrev_b32 v%d, 8, v%d" % (t + 3, t + 3))
    e("v_and_b32 v%d, 1, v%d" % (t + 4, t + 1))
    e("v_lshlrev_b32 v%d, 3, v%d" % (t + 4, t + 4))
    e("v_lshl_add_u32 v%d, v%d, 1, v%d" % (t + 4, t + 2, t + 4))
    e("v_bfe_u32 v%d, v1, 1, 1" % (t + 5))
    e("s_lshl_b32 s%d, s%d, 1" % (S_T2, S_W))
    e("v_add_u32 v%d, s%d, v%d" % (t + 5, S_T2, t + 5))
    e("v_xor_b32 v%d, v%d, v%d" % (t + 5, t + 5, t + 4))
    e("v_lshl_add_u32 v%d, v%d, 4, v%d" % (t + 3, t + 5, t + 3))
    e("v_and_b32 v%d, 1, v1" % (t + 5))
    e("v_lshl_add_u32 v%d, v%d, 3, v%d" % (V_A2, t + 5, t + 3))
    e("v_add_u32 v%d, %d, v%d" % (V_A2, L_V, V_A2))
    e("v_xor_b32 v%d, v%d, v%d" % (t + 3, t + 1, t + 7))
    e("v_lshlrev_b32 v%d, 4, v%d" % (t + 3, t + 3))
    e("v_lshl_add_u32 v%d, v%d, 8, v%d" % (t + 3, t + 7, t + 3))
    e("s_lshl_b32 s%d, s%d, 12" % (S_T2, S_W))
    e("s_add_u32 s%d, s%d, %d" % (S_T2, S_T2, L_K))
    e("v_add_u32 v%d, s%d, v%d" % (V_AK, S_T2, t + 3))
    for s_ in range(1, 4):
        e("v_xor_b32 v%d, %d, v%d" % (V_AK + s_, 64 * s_, V_AK))
    e("v_mul_u32_u24 v%d, %d, v%d" % (t + 3, P_STRIDE, t))
    e("v_add_u32 v%d, v%d, v%d" % (t + 3, t + 3, V_MB))
    e("v_lshl_add_u32 v%d, v%d, 4, v%d" % (V_A3, t + 1, t + 3))
    e("v_lshl_add_u32 v%d, v%d, 3, v%d" % (V_A4, t + 1, t + 3))
    e("s_lshl_b32 s%d, s%d, 5" % (S_T2, S_W))
    e("v_add_u32 v%d, s%d, v%d" % (V_A4, S_T2, V_A4))
    e("v_lshl_add_u32 v%d, v%d, 5, v%d" % (V_A6, t, V_MB))
    e("s_lshl_b32 s%d, s%d, 2" % (S_T2, S_W))
    e("v_add_u32 v%d, s%d, v%d" % (V_A5, S_T2, V_A6))
    e("v_lshlrev_b32 v%d, 4, v%d" % (V_AQ, t + 7))
    e("v_lshl_add_u32 v%d, v%d, 11, v%d" % (V_AQ, t + 1, V_AQ))
    e("s_lshl_b32 s%d, s%d, 13" % (S_T2, S_G))
    e("s_lshl_b32 s%d, s%d, 8" % (S_T3, S_W))
    e("s_add_u32 s%d, s%d, s%d" % (S_T2, S_T2, S_T3))
    e("s_add_u32 s%d, s%d, %d" % (S_T2, S_T2, WS_QR))
    e("v_add_u32 v%d, s%d, v%d" % (V_AQ, S_T2, V_AQ))
    e("v_lshlrev_b32 v%d, 3, v%d" % (V_AQW, t + 7))
    e("v_lshl_add_u32 v%d, v%d, 1, v%d" % (V_AQW, t + 1, V_AQW))
    e("s_lshl_b32 s%d, s%d, 7" % (S_T2, S_W))
    e("s_add_u32 s%d, s%d, %d" % (S_T2, S_T2, L_MISC))
    e("v_add_u32 v%d, s%d, v%d" % (V_AQW, S_T2, V_AQW))
    e("v_lshl_add_u32 v%d, v%d, 8, v%d" % (V_AQB, t, V_MB))
    e("v_lshl_add_u32 v%d, v%d, 4, v%d" % (V_AQB, t + 1, V_AQB))
    e("v_and_b32 v%d, 7, v1" % (t + 3))
    e("v_lshlrev_b32 v%d, 4, v%d" % (V_AS2, t + 3))
    e("v_lshl_add_u32 v%d, v%d, 12, v%d" % (V_AS2, t + 1, V_AS2))
    e("s_lshl_b32 s%d, s%d, 17" % (S_T2, S_G))
    e("s_lshl_b32 s%d, s%d, 14" % (S_T3, S_W))
    e("s_add_u32 s%d, s%d, s%d" % (S_T2, S_T2, S_T3))
    e("s_lshl_b32 s%d, s%d, 7" % (S_T3, S_C))
    e("s_add_u32 s%d, s%d, s%d" % (S_T2, S_T2, S_T3))
    e("s_add_u32 s%d, s%d, %d" % (S_T2, S_T2, WS_S2))
    e("v_add_u32 v%d, s%d, v%d" % (V_AS2, S_T2, V_AS2))
    e("s_lshl_b32 s%d, s%d, 2" % (S_T2, S_W))
    e("v_add_u32 v%d, s%d, v%d" % (t + 3, S_T2, t + 1))
    e("v_mul_u32_u24 v%d, %d, v%d" % (V_AS3, S3_STRIDE, t + 3))
    e("v_lshl_add_u32 v%d, v%d, 4, v%d" % (V_AS3, t, V_AS3))
    e("s_lshl_b32 s%d, s2, 6" % S_T2)
    e("s_add_u32 s%d, s%d, %d" % (S_T2, S_T2, WS_S3))
    e("v_add_u32 v%d, s%d, v%d" % (V_AS3, S_T2, V_AS3))
    e("v_and_b32 v%d, 1, v%d" % (t + 4, t + 1))
    e("s_lshl_b32 s%d, s%d, 1" % (S_T2, S_MLP))
    e("v_cmp_eq_u32 vcc, s%d, v%d" % (S_T2, t + 1))
    e("v_cndmask_b32 v%d, v%d, v%d, vcc" % (t + 4, t + 4, t + 1))
    e("v_lshl_add_u32 v%d, v%d, 3, v%d" % (t + 4, t + 4, t + 2))
    e("v_lshlrev_b32 v%d, 10, v%d" % (t + 4, t + 4))
    e("v_and_b32 v%d, 1, v%d" % (t + 5, t + 2))
    e("v_bfe_u32 v%d, v%d, 1, 1" % (t + 6, t + 2))
    e("v_lshl_add_u32 v%d, v%d, 3, v%d" % (t + 5, t + 6, t + 5))
    e("s_lshl_b32 s%d, s%d, 3" % (S_T2, S_W))
    e("v_lshl_add_u32 v%d, v%d, 1, s%d" % (t + 6, t, S_T2))
    e("v_xor_b32 v%d, v%d, v%d" % (t + 6, t + 6, t + 5))
    e("v_lshl_add_u32 v%d, v%d, 4, v%d" % (V_AW0, t + 6, t + 4))
    e("v_add_u32 v%d, %d, v%d" % (V_AW0, L_W, V_AW0))
    e("v_xor_b32 v%d, 16, v%d" % (V_AW1, V_AW0))
    e("v_lshl_add_u32 v%d, v%d, 4, v%d" % (V_AAV, t + 1, V_MB))
    e("s_mul_i32 s%d, s2, %d" % (S_T2, S3_STRIDE))
    e("s_lshl_b32 s%d, s%d, 11" % (S_T3, S_W))
    e("s_add_u32 s%d, s%d, s%d" % (S_T2, S_T2, S_T3))
    e("s_add_u32 s%d, s%d, %d" % (S_T2, S_T2, WS_S3))
    e("v_add_u32 v%d, s%d, v%d" % (V_AI, S_T2, V_L16))
    e("v_lshl_add_u32 v%d, v%d, 4, v%d" % (V_AFR, t, V_MB))
    e("v_lshl_add_u32 v%d, v%d, 2, v%d" % (V_AFR, t + 1, V_AFR))
    e("s_lshl_b32 s%d, s%d, 6" % (S_T2, S_W))
    e("v_add_u32 v%d, s%d, v%d" % (V_AFR, S_T2, V_AFR))
    e("v_lshrrev_b32 v%d, 3, v1" % (t + 1))
    e("v_lshl_add_u32 v%d, v%d, 1, v%d" % (t + 1, t + 1, V_MB))
    e("s_lshl_b32 s%d, s%d, 8" % (S_T2, S_T0))
    e("s_lshl_b32 s%d, s%d, 4" % (S_T3, S_W))
    e("s_add_u32 s%d, s%d, s%d" % (S_T2, S_T2, S_T3))
    e("v_add_u32 v%d, s%d, v%d" % (t + 2, S_T2, t + 1))
    e("s_lshl_b32 s%d, s%d, 8" % (S_T2, S_U2))
    e("s_add_u32 s%d, s%d, s%d" % (S_T2, S_T2, S_T3))
    e("v_add_u32 v%d, s%d, v%d" % (t + 3, S_T2, t + 1))
    e("s_add_u32 s%d, s%d, %d" % (S_U0, S_W, OFF["wq"] + 9))
    e("s_add_u32 s%d, s%d, %d" % (S_U1, S_W, OFF["w13"] + 9))
    e("s_lshl_b32 s%d, s%d, 2" % (S_U3, S_W))
    e("s_add_u32 s%d, s%d, %d" % (S_U3, S_U3, OFF["k"] + 4))
    e("s_waitcnt lgkmcnt(0)")
    e("s_barrier")
    g.stamp(1)
    lds_wait(["ds_read_b64 %s, v%d offset:%d" % (vr(t + 4, 2), V_MB, M_FLG + F_TAG),
              "ds_read_u16 v%d, v%d offset:%d" % (V_XA, t + 2, M_XN),
              "ds_read_u16 v%d, v%d offset:%d" % (V_XB, t + 2, M_XN + 128),
              "ds_read_u16 v%d, v%d offset:%d" % (V_XC, t + 3, M_XN),
              "ds_read_u16 v%d, v%d offset:%d" % (V_XD, t + 3, M_XN + 128)],
             ["v_cmp_ne_u32 vcc, 1, v%d" % (t + 5)], "xn")
    e("v_readfirstlane_b32 s%d, v%d" % (S_TAG, t + 4))
    e("v_lshlrev_b32 v%d, 16, v%d" % (V_XAH, V_XA))
    e("v_lshlrev_b32 v%d, 16, v%d" % (V_XBH, V_XB))
    e("v_lshlrev_b32 v%d, 16, v%d" % (V_XCH, V_XC))
    e("v_lshlrev_b32 v%d, 16, v%d" % (V_XDH, V_XD))
    g.stamp(2)
    lds_wait([rd_prog(t), "ds_read_b128 %s, v%d offset:%d" % (vr(V_WD, 4), V_ARW, L_WQ),
              "ds_read_b128 %s, v%d offset:%d" % (vr(V_WD + 4, 4), V_ARW, L_WQ + 8192)], ck_prog(t, "s%d" % S_U0), "wq", 1)
    g.stamp(3)
    gemv_unit(g, V_WD, V_XA, V_XB, V_XAH, V_XBH, V_ACC)
    reduce_scatter8(g, V_ACC, t)
    e("ds_write_b32 v%d, v%d offset:%d" % (V_A1, t, M_R1))
    set_flag8(V_ONEB, F_R1)
    g.stamp(4)
    e("s_not_b32 s%d, s%d" % (S_T2, S_TAG))
    e("v_mov_b32 v%d, s%d" % (V_R + 3, S_T2))
    e("s_mov_b32 exec_lo, 0x000f000f")
    e("s_mov_b32 exec_hi, 0x000f000f")
    e("global_store_dwordx4 v%d, %s, %s sc1" % (V_AS3, vr(V_R, 4), sp(S_WS)))
    e("s_mov_b64 exec, -1")
    lds_wait([rd_prog(t), "ds_read_b128 %s, v%d offset:%d" % (vr(V_WD, 4), V_ARW, L_W13),
              "ds_read_b128 %s, v%d offset:%d" % (vr(V_WD + 4, 4), V_ARW, L_W13 + 8192)], ck_prog(t, "s%d" % S_U1), "w13", 1)
    gemv_unit(g, V_WD, V_XC, V_XD, V_XCH, V_XDH, V_ACC)
    reduce_scatter8(g, V_ACC, t)
    e("ds_write_b32 v%d, v%d offset:%d" % (V_A1, t, M_R1M))
    set_flag8(V_ONEB, F_R1M)
    g.stamp(5)
    for i in range(4):
        e("v_mov_b32 v%d, 0x3f803f80" % (V_ONE + i))
    e("s_mov_b32 s%d, 0xf0f0f0f0" % S_MASK)
    e("s_mov_b32 s%d, 0xf0f0f0f0" % (S_MASK + 1))
    lds_wait([rd_prog(t)], ck_prog(t, str(THRQ)), "thrq")
    g.stamp(6)
    e("global_load_dwordx4 %s, v%d, %s sc1" % (vr(V_R, 4), V_AQ, sp(S_WS)))
    lds_wait([rd_prog(t)], ck_prog(t, str(THRQ2)), "thrq2")
    e("global_load_dwordx4 %s, v%d, %s sc1" % (vr(V_VT, 4), V_AQ, sp(S_WS)))
    lds_wait([rd_prog(t)] + ["ds_read_b128 %s, v%d" % (vr(V_KD + 4 * s_, 4), V_AK + s_) for s_ in range(4)],
             ck_prog(t, "s%d" % S_U3), "kk", 1)
    dn = g.newlabel("qdone"); lp = g.newlabel("qpoll")
    e("s_waitcnt vmcnt(1)")
    e("v_cmp_ne_u32 vcc, s%d, v%d" % (S_TAG, V_R + 3))
    e("s_cbranch_vccz %s" % dn)
    e("s_waitcnt vmcnt(0)")
    for j in range(4):
        e("v_mov_b32 v%d, v%d" % (V_R + j, V_VT + j))
    e("s_mov_b32 s%d, %d" % (S_CNT, SPIN))
    g.lab(lp)
    e("v_cmp_ne_u32 vcc, s%d, v%d" % (S_TAG, V_R + 3))
    e("s_cbranch_vccz %s" % dn)
    e("global_load_dwordx4 %s, v%d, %s sc1" % (vr(V_R, 4), V_AQ, sp(S_WS)))
    e("s_sub_u32 s%d, s%d, 1" % (S_CNT, S_CNT))
    e("s_cmp_lg_u32 s%d, 0" % S_CNT)
    e("s_waitcnt vmcnt(0)")
    e("s_cbranch_scc1 %s" % lp)
    g.lab(dn)
    g.stamp(7)
    unpack4(g, V_R, V_D)
    rows_reduce4(g, V_D)
    e("v_cvt_pk_bf16_f32 v%d, v%d, v%d" % (V_D, V_D, V_D))
    e("ds_write_b16 v%d, v%d offset:%d" % (V_AQW, V_D, M_Q))
    set_flag8(V_ONEB, F_Q)
    lds_wait([rd_flag8(t, F_Q)] + ["ds_read_b128 %s, v%d offset:%d" % (vr(V_QB + 4 * s_, 4), V_AQB, M_Q + 64 * s_) for s_ in range(4)],
             ck_flag8(t), "qf", 1)
    g.stamp(8)
    for s_ in range(4):
        e("v_mfma_f32_16x16x32_bf16 %s, %s, %s, %s" % (vr(V_S, 4), vr(V_KD + 4 * s_, 4), vr(V_QB + 4 * s_, 4), "0" if s_ == 0 else vr(V_S, 4)))
    g.nop(10)
    e("v_cvt_pk_bf16_f32 v%d, v%d, v%d" % (V_D, V_S, V_S + 1))
    e("v_cvt_pk_bf16_f32 v%d, v%d, v%d" % (V_D + 1, V_S + 2, V_S + 3))
    for j in range(2):
        e("v_lshlrev_b32 v%d, 16, v%d" % (V_S + 2 * j, V_D + j))
        e("v_and_b32 v%d, s%d, v%d" % (V_S + 2 * j + 1, S_HI, V_D + j))
    for j in range(4):
        e("v_mul_f32 v%d, s%d, v%d" % (V_S + j, S_SCALE, V_S + j))
    e("v_cvt_pk_bf16_f32 v%d, v%d, v%d" % (V_D, V_S, V_S + 1))
    e("v_cvt_pk_bf16_f32 v%d, v%d, v%d" % (V_D + 1, V_S + 2, V_S + 3))
    for j in range(2):
        e("v_lshlrev_b32 v%d, 16, v%d" % (V_S + 2 * j, V_D + j))
        e("v_and_b32 v%d, s%d, v%d" % (V_S + 2 * j + 1, S_HI, V_D + j))
    e("v_max3_f32 v%d, v%d, v%d, v%d" % (V_D + 2, V_S, V_S + 1, V_S + 2))
    e("v_max_f32 v%d, v%d, v%d" % (V_D + 2, V_D + 2, V_S + 3))
    bfly_rows(g, V_D + 2, V_D + 3, "max_f32")
    e("s_mov_b64 exec, 15")
    e("ds_write_b32 v%d, v%d offset:%d" % (V_A5, V_D + 2, M_MX))
    e("s_mov_b64 exec, -1")
    set_flag8(V_ONEB, F_MX)
    lds_wait([rd_flag8(t, F_MX),
              "ds_read_b128 %s, v%d offset:%d" % (vr(V_D + 4, 4), V_A6, M_MX),
              "ds_read_b128 %s, v%d offset:%d" % (vr(V_D + 8, 4), V_A6, M_MX + 16)], ck_flag8(t), "mx")
    e("v_max3_f32 v%d, v%d, v%d, v%d" % (V_D + 2, V_D + 4, V_D + 5, V_D + 6))
    e("v_max3_f32 v%d, v%d, v%d, v%d" % (V_D + 3, V_D + 7, V_D + 8, V_D + 9))
    e("v_max3_f32 v%d, v%d, v%d, v%d" % (V_D + 2, V_D + 2, V_D + 10, V_D + 11))
    e("v_max_f32 v%d, v%d, v%d" % (V_R, V_D + 2, V_D + 3))
    for j in range(4):
        e("v_sub_f32 v%d, v%d, v%d" % (V_S + j, V_S + j, V_R))
    for j in range(4):
        e("v_mul_f32 v%d, s%d, v%d" % (V_S + j, S_L2E, V_S + j))
    for j in range(4):
        e("v_exp_f32 v%d, v%d" % (V_S + j, V_S + j))
    g.nop(1)
    e("v_cvt_pk_bf16_f32 v%d, v%d, v%d" % (V_D, V_S, V_S + 1))
    e("v_cvt_pk_bf16_f32 v%d, v%d, v%d" % (V_D + 1, V_S + 2, V_S + 3))
    e("s_mov_b32 exec_lo, 0x000f000f")
    e("s_mov_b32 exec_hi, 0x000f000f")
    e("ds_write_b64 v%d, %s offset:%d" % (V_A4, vr(V_D, 2), M_P))
    e("s_mov_b64 exec, -1")
    set_flag8(V_ONEB, F_P)
    e("v_mov_b32 v%d, 0" % (V_R + 2))
    e("v_mov_b32 v%d, s%d" % (V_R + 3, S_TAG))
    e("v_mov_b32 v%d, s%d" % (V_D + 3, S_TAG))
    lds_wait([rd_flag8(t, F_P), "ds_read_b32 v%d, v%d offset:%d" % (t + 2, V_MB, M_FLG + F_MODE)] +
             ["ds_read_b128 %s, v%d offset:%d" % (vr(V_QB + 4 * st, 4), V_A3, M_P + 64 * st) for st in range(4)],
             ck_flag8(t) + ["v_cmp_eq_u32 %s, 0, v%d" % (sp(S_MASK2), t + 2), "s_or_b64 vcc, vcc, %s" % sp(S_MASK2)], "pf")
    e("v_readfirstlane_b32 s%d, v%d" % (S_MODE, t + 2))
    g.stamp(9)
    e("s_waitcnt vmcnt(0)")
    lds_wait([rd_prog(t)] + ["ds_read_b64_tr_b16 %s, v%d offset:%d" % (vr(V_VT + 4 * st + 2 * hf, 2), V_A2, st * 8192 + hf * 1024)
                             for st in range(4) for hf in range(2)], ck_prog(t, str(THRV)), "vv", 1)
    g.stamp(10)
    for st in range(4):
        cin = "0" if st == 0 else vr(V_O, 4)
        cin2 = "0" if st == 0 else vr(V_LS, 4)
        e("v_mfma_f32_16x16x32_bf16 %s, %s, %s, %s" % (vr(V_O, 4), vr(V_VT + 4 * st, 4), vr(V_QB + 4 * st, 4), cin))
        e("v_mfma_f32_16x16x32_bf16 %s, %s, %s, %s" % (vr(V_LS, 4), vr(V_ONE, 4), vr(V_QB + 4 * st, 4), cin2))
    g.nop(9)
    pack4(g, V_O, V_D)
    e("v_mov_b32 v%d, v%d" % (V_R + 1, V_LS))
    for j in range(3):
        e("v_cndmask_b32 v%d, v%d, v%d, %s" % (V_D + j, V_D + j, V_R + j, sp(S_MASK)))
    e("s_mov_b32 exec_lo, 0x00ff00ff")
    e("s_mov_b32 exec_hi, 0x00ff00ff")
    gl = g.newlabel("s2glob"); jn = g.newlabel("s2join")
    e("s_cmp_eq_u32 s%d, 1" % S_MODE)
    e("s_cbranch_scc0 %s" % gl)
    e("global_store_dwordx4 v%d, %s, %s" % (V_AS2, vr(V_D, 4), sp(S_WS)))
    e("s_branch %s" % jn)
    g.lab(gl)
    e("global_store_dwordx4 v%d, %s, %s sc1" % (V_AS2, vr(V_D, 4), sp(S_WS)))
    g.lab(jn)
    e("s_mov_b64 exec, -1")
    g.stamp(11)
    lds_wait([rd_prog(t)] + ["ds_read_b64_tr_b16 %s, v%d offset:%d" % (vr(V_KD + 4 * tau + 2 * hf, 2), V_AW1 if tau >= 2 else V_AW0, hf * 4096 + (tau & 1) * 8)
                             for tau in range(4) for hf in range(2)], ck_prog(t, str(THRW)), "ww", 1)
    e("s_mov_b32 s%d, 0xaaaaaaaa" % S_MASK)
    e("s_mov_b32 s%d, 0xaaaaaaaa" % (S_MASK + 1))
    e("s_mov_b32 s%d, 0xcccccccc" % S_MASK2)
    e("s_mov_b32 s%d, 0xcccccccc" % (S_MASK2 + 1))
    e("v_mov_b32 v%d, s%d" % (V_R + 3, S_TAG))
    g.stamp(12)
    lds_wait(["ds_read_b32 v%d, v%d offset:%d" % (t, V_MB, M_FLG + F_AV),
              "ds_read_b128 %s, v%d offset:%d" % (vr(V_QB, 4), V_AAV, M_AV)], ["v_cmp_ne_u32 vcc, 1, v%d" % t], "av")
    g.stamp(13)
    for tau in range(4):
        e("v_mfma_f32_16x16x32_bf16 %s, %s, %s, 0" % (vr(V_D + 4 * tau, 4), vr(V_KD + 4 * tau, 4), vr(V_QB, 4)))
    g.nop(8)
    for j in range(4):
        e("v_cndmask_b32 v%d, v%d, v%d, %s" % (V_D + j, V_D + j, V_D + 4 + j, sp(S_MASK)))
        e("v_cndmask_b32 v%d, v%d, v%d, %s" % (V_D + 8 + j, V_D + 8 + j, V_D + 12 + j, sp(S_MASK)))
    for j in range(4):
        e("v_cndmask_b32 v%d, v%d, v%d, %s" % (V_D + j, V_D + j, V_D + 8 + j, sp(S_MASK2)))
    pack4(g, V_D, V_R)
    e("s_mov_b32 exec_lo, 0x000f000f")
    e("s_mov_b32 exec_hi, 0x000f000f")
    e("global_store_dwordx4 v%d, %s, %s sc1" % (V_AS3, vr(V_R, 4), sp(S_WS)))
    e("s_mov_b64 exec, -1")
    g.stamp(14)
    e("s_cmp_ge_u32 s2, 32")
    e("s_cbranch_scc1 L_fin")
    if S3SLEEP:
        e("s_sleep %d" % S3SLEEP)
    e("s_mov_b32 s%d, %d" % (S_CNT, SPIN))
    lp = g.newlabel("opoll"); dn = g.newlabel("odone")
    g.lab(lp)
    e("global_load_dwordx4 %s, v%d, %s sc1" % (vr(V_D, 4), V_AI, sp(S_WS)))
    e("global_load_dwordx4 %s, v%d, %s offset:1024 sc1" % (vr(V_D + 4, 4), V_AI, sp(S_WS)))
    e("s_waitcnt vmcnt(0)")
    e("v_cmp_ne_u32 vcc, s%d, v%d" % (S_TAG, V_D + 3))
    e("v_cmp_ne_u32 %s, s%d, v%d" % (sp(S_MASK), S_TAG, V_D + 7))
    e("s_or_b64 vcc, vcc, %s" % sp(S_MASK))
    e("s_cbranch_scc0 %s" % dn)
    spin_tail(lp)
    g.lab(dn)
    g.stamp(15)
    unpack4(g, V_D, V_D + 8)
    unpack4(g, V_D + 4, V_D + 12)
    for j in range(4):
        e("v_add_f32 v%d, v%d, v%d" % (V_D + 8 + j, V_D + 8 + j, V_D + 12 + j))
    rows_reduce4(g, V_D + 8)
    g.nop(2)
    e("v_add_f32_dpp v%d, v%d, v%d row_ror:8 row_mask:0xf bank_mask:0xf" % (V_D + 8, V_D + 8, V_D + 8))
    g.nop(2)
    e("v_add_f32_dpp v%d, v%d, v%d row_ror:4 row_mask:0xf bank_mask:0xf" % (V_D + 8, V_D + 8, V_D + 8))
    e("s_mov_b32 exec_lo, 0x000f000f")
    e("s_mov_b32 exec_hi, 0x000f000f")
    e("ds_write_b32 v%d, v%d offset:%d" % (V_AFR, V_D + 8, M_FR))
    e("s_mov_b64 exec, -1")
    set_flag8(V_ONEB, F_FR)
    e("s_branch L_fin")

    g.lab("L_loader")
    e("s_setprio 3")
    e("s_and_b32 s%d, s%d, 3" % (S_T0, S_C))
    e("s_lshr_b32 s%d, s%d, 2" % (S_T1, S_C))
    e("s_lshl_b32 s%d, s%d, 20" % (S_U0, S_T0))
    e("s_lshl_b32 s%d, s%d, 10" % (S_T2, S_G))
    e("s_add_u32 s%d, s%d, s%d" % (S_U0, S_U0, S_T2))
    e("s_lshl_b32 s%d, s%d, 7" % (S_T2, S_T1))
    e("s_add_u32 s%d, s%d, s%d" % (S_U0, S_U0, S_T2))
    e("s_lshl_b32 s%d, s%d, 24" % (S_U1, S_G))
    e("s_lshl_b32 s%d, s%d, 15" % (S_T2, S_C))
    e("s_add_u32 s%d, s%d, s%d" % (S_U1, S_U1, S_T2))
    e("s_add_u32 s%d, s%d, 0xF00000" % (S_U1, S_U1))
    e("s_and_b32 s%d, s%d, 3" % (S_U2, S_G))
    e("s_mul_i32 s%d, s%d, %d" % (S_U2, S_U2, 128 * 3584))
    e("s_lshl_b32 s%d, s%d, 7" % (S_T3, S_C))
    e("s_add_u32 s%d, s%d, s%d" % (S_U2, S_U2, S_T3))
    e("s_lshl_b32 s%d, s%d, 19" % (S_U3, S_G))
    e("s_lshl_b32 s%d, s%d, 12" % (S_T3, S_C))
    e("s_add_u32 s%d, s%d, s%d" % (S_U3, S_U3, S_T3))
    e("v_lshrrev_b32 v28, 3, v1")
    e("v_and_b32 v29, 7, v1")
    e("v_lshlrev_b32 v29, 4, v29")
    e("v_lshl_add_u32 v8, v28, 13, v29")
    e("v_add_u32 v8, s%d, v8" % S_U0)
    for j in range(1, 4):
        e("v_add_u32 v%d, %d, v8" % (8 + j, j * (0x10000 - 1024)))
    e("v_mul_u32_u24 v12, 3584, v28")
    e("v_add_u32 v12, v12, v29")
    e("v_add_u32 v12, s%d, v12" % S_U2)
    for j in range(1, 4):
        e("v_add_u32 v%d, %d, v12" % (12 + j, j * (8 * 3584 - 1024)))
    e("v_lshrrev_b32 v28, 4, v1")
    e("v_and_b32 v29, 15, v1")
    e("v_xor_b32 v16, v29, v28")
    e("v_lshlrev_b32 v16, 4, v16")
    e("v_lshl_add_u32 v16, v28, 8, v16")
    e("v_add_u32 v16, s%d, v16" % S_U1)
    for j in range(1, 4):
        e("v_xor_b32 v%d, %d, v16" % (16 + j, 64 * j))
    e("v_lshlrev_b32 v20, 1, v28")
    e("v_xor_b32 v20, v29, v20")
    e("v_lshlrev_b32 v20, 4, v20")
    e("v_lshl_add_u32 v20, v28, 8, v20")
    e("v_add_u32 v20, s%d, v20" % S_U1)
    e("v_xor_b32 v21, 128, v20")
    e("v_add_u32 v24, s%d, v3" % S_U3)
    e("v_xor_b32 v25, 16, v24")
    e("v_xor_b32 v26, 128, v24")
    e("v_xor_b32 v27, 144, v24")
    e("v_mov_b32 v30, v3")
    e("v_xor_b32 v31, 16, v3")
    e("v_xor_b32 v32, 128, v3")
    e("v_xor_b32 v33, 144, v3")
    e("v_lshl_add_u32 v22, v1, 2, v%d" % V_MB)
    e("s_lshl_b32 s%d, s%d, 13" % (S_T3, S_J))
    e("s_mov_b32 s%d, %d" % (S_E, 32 * 3584))
    e("s_mov_b32 m0, 0")
    e("s_waitcnt lgkmcnt(0)")
    g.stamp(1)
    e("s_mov_b64 %s, %s" % (sp(S_A), sp(S_WQ)))
    e("s_cmp_ge_u32 s%d, 4" % S_G)
    e("s_cselect_b32 s%d, s%d, s%d" % (S_B, S_W3, S_W1))
    e("s_cselect_b32 s%d, s%d, s%d" % (S_B + 1, S_W3 + 1, S_W1 + 1))
    e("s_add_u32 s%d, s%d, s%d" % (S_D, S_W2, S_T3))
    e("s_addc_u32 s%d, s%d, 0" % (S_D + 1, S_W2 + 1))
    e("s_mov_b64 %s, %s" % (sp(S_C2), sp(S_K)))
    e("s_mov_b64 %s, %s" % (sp(S_F), sp(S_V)))
    e("s_mov_b64 %s, %s" % (sp(S_MASK), sp(S_WO)))
    rep = (set(range(OFF["wq"] + 9, OFF["wq"] + 17)) | set(range(OFF["w13"] + 9, OFF["w13"] + 17)) | set(range(OFF["k"] + 4, OFF["k"] + 33, 4)) |
           {THRQ, THRQ2, THRX, THRG, THRV, THRS2, THRW, NLOADS})
    segs = {"wq": ([8, 9, 10, 11], S_A, "0x40000", 4, L_WQ), "w13": ([12, 13, 14, 15], S_B, "s%d" % S_E, 4, L_W13),
            "k": ([16, 17, 18, 19], S_C2, "4096", 8, L_K), "v": ([20, 20, 21, 21], S_F, "4096", 8, L_V),
            "wo": ([24, 25, 26, 27], S_MASK, "0x20000", 4, L_W), "w2": ([30, 31, 32, 33], S_D, "4096", 2, L_W + 16384)}
    BARAT = min(o.get("barat", 16), D)
    def stream(order, st):
        loads = []
        for sg in order:
            voffs, base, step, ng, lb = segs[sg]
            for gi in range(ng):
                for j in range(4):
                    loads.append((OFF[sg] + 4 * gi + j + 1, voffs[j], base, 1024 * j, lb + 4096 * gi, step))
        N = len(loads)
        def value(k):
            return NLOADS if k >= N else loads[k][0] - 1
        last = [0]
        def report(k):
            v = value(k)
            if any(last[0] < r <= v for r in rep):
                e("v_mov_b32 v23, %d" % v)
                e("ds_write_b32 v22, v23 offset:%d" % M_PROG)
                last[0] = v
        def wanted(k):
            return any(last[0] < r <= value(k) for r in rep)
        for n in range(1, N + 1):
            vi, voff, base, ioff, m0v, step = loads[n - 1]
            if n == 1:
                e("s_mov_b32 m0, %d" % m0v)
                e("s_nop 0")
            e("global_load_lds_dwordx4 v%d, %s offset:%d nt" % (voff, sp(base), ioff))
            if ioff == 3072:
                if n < N:
                    e("s_mov_b32 m0, %d" % loads[n][4])
                e("s_add_u32 s%d, s%d, %s" % (base, base, step))
                e("s_addc_u32 s%d, s%d, 0" % (base + 1, base + 1))
            if n == BARAT:
                e("s_barrier")
                if st: g.stamp(2)
            if n >= D:
                e("s_waitcnt vmcnt(%d)" % (D - 1))
                report(n - D + 1)
            if st:
                if n == D: g.stamp(3)
                if n == 64: g.stamp(4)
                if n == 96: g.stamp(5)
        if st: g.stamp(6)
        for k in range(D - 2, -1, -1):
            if wanted(N - k):
                e("s_waitcnt vmcnt(%d)" % k)
                report(N - k)
        if st: g.stamp(7)
        e("s_waitcnt lgkmcnt(0)")
        e("s_branch L_fin")
    nm = g.newlabel("ldnomlp")
    e("s_cmp_eq_u32 s%d, 0" % S_MLP)
    e("s_cbranch_scc1 %s" % nm)
    stream(ORDER, True)
    g.lab(nm)
    stream([x for x in ORDER if x not in ("w13", "w2")], True)

    g.lab("L_sync")
    e("s_setprio 2")
    e("v_mov_b32 v26, %d" % WS_E)
    e("s_waitcnt lgkmcnt(0)")
    e("global_load_dwordx4 v[72:75], v3, %s" % sp(S_X))
    e("global_load_dword v25, v26, %s sc1" % sp(S_WS))
    e("s_and_b32 s%d, s%d, 3" % (S_T0, S_C))
    e("s_lshr_b32 s%d, s%d, 2" % (S_T1, S_C))
    e("s_lshl_b32 s%d, s%d, 13" % (S_T2, S_G))
    e("s_lshl_b32 s%d, s%d, 11" % (S_T3, S_T0))
    e("s_add_u32 s%d, s%d, s%d" % (S_T2, S_T2, S_T3))
    e("s_lshl_b32 s%d, s%d, 8" % (S_T3, S_T1))
    e("s_add_u32 s%d, s%d, s%d" % (S_T2, S_T2, S_T3))
    e("s_add_u32 s%d, s%d, %d" % (S_T2, S_T2, WS_QR))
    e("v_add_u32 v12, s%d, v3" % S_T2)
    e("s_mul_i32 s%d, s%d, 7168" % (S_T2, S_G))
    e("s_lshl_b32 s%d, s%d, 8" % (S_T3, S_C))
    e("s_add_u32 s%d, s%d, s%d" % (S_T2, S_T2, S_T3))
    e("s_add_u32 s%d, s%d, %d" % (S_T2, S_T2, WS_GP))
    e("v_add_u32 v13, s%d, v3" % S_T2)
    e("s_lshl_b32 s%d, s%d, 9" % (S_T2, S_G))
    e("s_add_u32 s%d, s%d, %d" % (S_T2, S_T2, WS_XT))
    e("v_and_b32 v14, 31, v1")
    e("v_lshlrev_b32 v14, 4, v14")
    e("v_add_u32 v14, s%d, v14" % S_T2)
    e("s_lshl_b32 s%d, s%d, 4" % (S_T3, S_C))
    e("s_add_u32 s%d, s%d, s%d" % (S_T2, S_T2, S_T3))
    e("v_mov_b32 v15, s%d" % S_T2)
    e("v_bfe_u32 v16, v1, 3, 1")
    e("v_lshlrev_b32 v16, 2, v16")
    e("v_and_b32 v17, 3, v1")
    e("v_add_u32 v16, v16, v17")
    e("v_mul_u32_u24 v16, 7168, v16")
    e("v_bfe_u32 v17, v1, 2, 1")
    e("v_lshl_add_u32 v16, v17, 4, v16")
    e("s_lshl_b32 s%d, s%d, 5" % (S_T2, S_J))
    e("s_add_u32 s%d, s%d, %d" % (S_T2, S_T2, WS_GP))
    e("v_add_u32 v16, s%d, v16" % S_T2)
    e("s_lshl_b32 s%d, s%d, 17" % (S_T2, S_G))
    e("s_lshl_b32 s%d, s%d, 12" % (S_T3, S_C))
    e("s_add_u32 s%d, s%d, s%d" % (S_T2, S_T2, S_T3))
    e("s_add_u32 s%d, s%d, %d" % (S_T2, S_T2, WS_S2))
    e("v_add_u32 v18, s%d, v3" % S_T2)
    e("s_and_b32 s%d, s2, 31" % S_T2)
    e("s_lshl_b32 s%d, s%d, 5" % (S_T2, S_T2))
    e("v_and_b32 v23, 15, v1")
    e("v_lshlrev_b32 v23, 1, v23")
    e("v_add_u32 v23, s%d, v23" % S_T2)
    e("v_and_b32 v19, 3, v1")
    e("v_lshlrev_b32 v19, 3, v19")
    e("v_lshrrev_b32 v20, 4, v1")
    e("v_lshl_add_u32 v19, v20, 1, v19")
    e("v_add_u32 v19, v19, v%d" % V_MB)
    e("v_add_u32 v22, v3, v%d" % V_MB)
    e("v_mov_b32 v21, 1")
    for i in range(4):
        e("v_mov_b32 v%d, 0" % (8 + i))
    e("s_mov_b64 exec, 15")
    e("ds_write_b128 v22, v[8:11] offset:%d" % M_AV)
    e("s_mov_b64 exec, 0xff")
    e("ds_write_b128 v22, v[8:11] offset:%d" % M_FLG)
    e("s_mov_b64 exec, -1")
    e("v_mov_b32 v8, 0x80000000")
    e("ds_write_b32 v%d, v8 offset:%d" % (V_MB, M_PROG))
    e("s_getreg_b32 s%d, hwreg(HW_REG_XCC_ID, 0, 4)" % S_XCC)
    e("global_load_ushort v24, v23, %s" % sp(S_X))
    e("s_waitcnt lgkmcnt(0)")
    e("s_barrier")
    g.stamp(1)
    e("s_waitcnt vmcnt(2)")
    g.stamp(2)
    layernorm(g, 72, 76, 84, 92)
    e("ds_write_b128 v22, v[72:75] offset:%d" % M_XN)
    e("s_waitcnt vmcnt(1)")
    e("v_add_u32 v28, 1, v25")
    e("v_mov_b32 v29, 1")
    e("ds_write_b64 v%d, v[28:29] offset:%d" % (V_MB, M_FLG + F_TAG))
    e("v_readfirstlane_b32 s%d, v28" % S_TAG)
    g.stamp(3)
    e("v_mov_b32 v8, s%d" % S_XCC)
    e("v_mov_b32 v9, 0")
    e("v_mov_b32 v10, 0")
    e("v_mov_b32 v11, s%d" % S_TAG)
    e("s_mov_b64 exec, 1")
    e("global_store_dwordx4 v15, v[8:11], %s sc1" % sp(S_WS))
    e("s_mov_b64 exec, 0xffff")
    e("s_not_b32 s%d, s%d" % (S_T2, S_TAG))
    e("v_mov_b32 v35, s%d" % S_T2)
    e("global_store_dwordx4 v12, v[32:35], %s sc1" % sp(S_WS))
    sk = g.newlabel("sk")
    e("s_cmp_eq_u32 s%d, 0" % S_MLP)
    e("s_cbranch_scc1 %s" % sk)
    e("global_store_dwordx4 v13, v[32:35], %s sc1" % sp(S_WS))
    g.lab(sk)
    e("s_mov_b64 exec, -1")
    e("v_mov_b32 v39, s%d" % S_TAG)
    def sum8(base, foff, addr_store, nm):
        lds_wait([rd_flag8(28, foff)] + ["ds_read_b128 %s, v22 offset:%d" % (vr(40 + 4 * wv, 4), base + wv * 256) for wv in range(8)],
                 ck_flag8(28), nm, 1)
        for j in range(4):
            e("v_add_f32 v%d, v%d, v%d" % (40 + j, 40 + j, 44 + j))
            e("v_add_f32 v%d, v%d, v%d" % (48 + j, 48 + j, 52 + j))
            e("v_add_f32 v%d, v%d, v%d" % (56 + j, 56 + j, 60 + j))
            e("v_add_f32 v%d, v%d, v%d" % (64 + j, 64 + j, 68 + j))
        for j in range(4):
            e("v_add_f32 v%d, v%d, v%d" % (40 + j, 40 + j, 48 + j))
            e("v_add_f32 v%d, v%d, v%d" % (56 + j, 56 + j, 64 + j))
        for j in range(4):
            e("v_add_f32 v%d, v%d, v%d" % (40 + j, 40 + j, 56 + j))
        pack4(g, 40, 36)
        e("s_mov_b64 exec, 0xffff")
        e("global_store_dwordx4 v%d, v[36:39], %s sc1" % (addr_store, sp(S_WS)))
        e("s_mov_b64 exec, -1")
    sum8(M_R1, F_R1, 12, "r1")
    g.stamp(4)
    nm = g.newlabel("nomlp")
    e("s_cmp_eq_u32 s%d, 0" % S_MLP)
    e("s_cbranch_scc1 %s" % nm)
    sum8(M_R1M, F_R1M, 13, "r1m")
    g.lab(nm)
    g.stamp(5)
    lds_wait([rd_prog(28)], ck_prog(28, str(THRX)), "thrx")
    e("global_load_dwordx4 v[28:31], v14, %s sc1" % sp(S_WS))
    for i in range(4):
        e("global_load_dwordx4 %s, v18, %s offset:%d sc1" % (vr(40 + 4 * i, 4), sp(S_WS), 1024 * i))
    e("s_mov_b32 s%d, %d" % (S_CNT, SPIN))
    e("s_waitcnt vmcnt(4)")
    lp = g.newlabel("xpoll"); dn = g.newlabel("xdone")
    g.lab(lp)
    e("v_cmp_ne_u32 vcc, s%d, v31" % S_TAG)
    e("s_cbranch_vccz %s" % dn)
    e("global_load_dwordx4 v[28:31], v14, %s sc1" % sp(S_WS))
    e("s_sub_u32 s%d, s%d, 1" % (S_CNT, S_CNT))
    e("s_cmp_lg_u32 s%d, 0" % S_CNT)
    e("s_waitcnt vmcnt(0)")
    e("s_cbranch_scc1 %s" % lp)
    g.lab(dn)
    e("v_cmp_ne_u32 vcc, s%d, v28" % S_XCC)
    e("s_cmp_eq_u64 vcc, 0")
    e("s_cselect_b32 s%d, 1, 2" % S_MODE)
    if o.get("forceglobal"):
        e("s_mov_b32 s%d, 2" % S_MODE)
    e("v_mov_b32 v25, s%d" % S_MODE)
    e("ds_write_b32 v%d, v25 offset:%d" % (V_MB, M_FLG + F_MODE))
    g.stamp(6)
    lds_wait([rd_prog(28)], ck_prog(28, str(THRG)), "thrg")
    nm0 = g.newlabel("nomlp")
    e("s_cmp_eq_u32 s%d, 0" % S_MLP)
    e("s_cbranch_scc1 %s" % nm0)
    e("global_load_dwordx4 v[32:35], v16, %s sc1" % sp(S_WS))
    g.lab(nm0)
    g.stamp(7)
    lds_wait([rd_prog(28)], ck_prog(28, str(THRS2)), "thrs2")
    for i in range(4):
        e("global_load_dwordx4 %s, v18, %s offset:%d sc1" % (vr(40 + 4 * i, 4), sp(S_WS), 1024 * i))
    nm = g.newlabel("nomlp")
    e("s_cmp_eq_u32 s%d, 0" % S_MLP)
    e("s_cbranch_scc1 %s" % nm)
    e("s_mov_b64 exec, 0xffff")
    e("s_mov_b32 s%d, %d" % (S_CNT, SPIN))
    e("s_waitcnt vmcnt(4)")
    lp = g.newlabel("gpoll"); dn = g.newlabel("gdone")
    g.lab(lp)
    e("v_cmp_ne_u32 vcc, s%d, v35" % S_TAG)
    e("s_cbranch_vccz %s" % dn)
    e("global_load_dwordx4 v[32:35], v16, %s sc1" % sp(S_WS))
    e("s_sub_u32 s%d, s%d, 1" % (S_CNT, S_CNT))
    e("s_cmp_lg_u32 s%d, 0" % S_CNT)
    e("s_waitcnt vmcnt(0)")
    e("s_cbranch_scc1 %s" % lp)
    g.lab(dn)
    unpack4(g, 32, 28)
    g.nop(1)
    for qp in ("[1,0,3,2]", "[2,3,0,1]"):
        for j in range(4):
            e("v_add_f32_dpp v%d, v%d, v%d quad_perm:%s row_mask:0xf bank_mask:0xf" % (28 + j, 28 + j, 28 + j, qp))
    for j in range(4):
        bf16r(g, 28 + j, 28 + j)
    g.nop(2)
    for j in range(4):
        e("v_mov_b32_dpp v%d, v%d row_shl:8 row_mask:0xf bank_mask:0xf bound_ctrl:0" % (32 + j, 28 + j))
    for j in range(4):
        e("v_mul_f32 v%d, s%d, v%d" % (56 + j, S_L2E, 28 + j))
    for j in range(4):
        e("v_exp_f32 v%d, -v%d" % (56 + j, 56 + j))
    g.nop(1)
    for j in range(4):
        e("v_add_f32 v%d, 1.0, v%d" % (56 + j, 56 + j))
    for j in range(4):
        e("v_rcp_f32 v%d, v%d" % (60 + j, 56 + j))
    g.nop(1)
    for j in range(4):
        e("v_mul_f32 v%d, v%d, v%d" % (64 + j, 28 + j, 60 + j))
    for j in range(4):
        e("v_fma_f32 v%d, -v%d, v%d, v%d" % (68 + j, 64 + j, 56 + j, 28 + j))
    for j in range(4):
        e("v_fmac_f32 v%d, v%d, v%d" % (64 + j, 68 + j, 60 + j))
    for j in range(4):
        bf16r(g, 64 + j, 64 + j)
    for j in range(4):
        e("v_mul_f32 v%d, v%d, v%d" % (64 + j, 64 + j, 32 + j))
    e("v_cvt_pk_bf16_f32 v68, v64, v65")
    e("v_cvt_pk_bf16_f32 v69, v66, v67")
    e("v_bfe_u32 v27, v1, 2, 1")
    e("v_lshl_add_u32 v27, v27, 3, v%d" % V_MB)
    e("s_mov_b64 exec, 0x11")
    e("ds_write_b64 v27, v[68:69] offset:%d" % (M_AV + 32))
    e("s_mov_b64 exec, -1")
    g.lab(nm)
    g.stamp(8)
    e("s_mov_b32 s%d, %d" % (S_CNT, SPIN))
    lp = g.newlabel("s2poll"); dn = g.newlabel("s2done"); first = g.newlabel("s2first")
    e("s_branch %s" % first)
    g.lab(lp)
    for i in range(4):
        e("global_load_dwordx4 %s, v18, %s offset:%d sc1" % (vr(40 + 4 * i, 4), sp(S_WS), 1024 * i))
    g.lab(first)
    e("s_waitcnt vmcnt(0)")
    g.stamp(9)
    e("v_cmp_ne_u32 vcc, s%d, v43" % S_TAG)
    e("v_cmp_ne_u32 %s, s%d, v47" % (sp(S_MASK), S_TAG))
    e("v_cmp_ne_u32 %s, s%d, v51" % (sp(S_MASK2), S_TAG))
    e("v_cmp_ne_u32 %s, s%d, v55" % (sp(S_A), S_TAG))
    e("s_or_b64 vcc, vcc, %s" % sp(S_MASK))
    e("s_or_b64 %s, %s, %s" % (sp(S_MASK2), sp(S_MASK2), sp(S_A)))
    e("s_or_b64 vcc, vcc, %s" % sp(S_MASK2))
    e("s_cbranch_scc0 %s" % dn)
    spin_tail(lp)
    g.lab(dn)
    g.stamp(10)
    for i in range(4):
        e("v_mov_b32_dpp v%d, v%d row_shl:4 row_mask:0xf bank_mask:0xf bound_ctrl:0" % (56 + i, 40 + 4 * i))
    for i in range(4):
        e("v_mov_b32_dpp v%d, v%d row_shl:4 row_mask:0xf bank_mask:0xf bound_ctrl:0" % (60 + i, 41 + 4 * i))
    e("v_max3_f32 v28, v56, v57, v58")
    e("v_max_f32 v28, v28, v59")
    g.nop(2)
    e("v_max_f32_dpp v28, v28, v28 row_ror:8 row_mask:0xf bank_mask:0xf")
    bfly_rows(g, 28, 29, "max_f32")
    for i in range(4):
        unpack4(g, 40 + 4 * i, 64 + 4 * i)
    for i in range(4):
        e("v_sub_f32 v%d, v%d, v28" % (56 + i, 56 + i))
    for i in range(4):
        e("v_mul_f32 v%d, s%d, v%d" % (56 + i, S_L2E, 56 + i))
    for i in range(4):
        e("v_exp_f32 v%d, v%d" % (56 + i, 56 + i))
    g.nop(1)
    for j in range(4):
        e("v_mul_f32 v%d, v56, v%d" % (40 + j, 64 + j))
    e("v_mul_f32 v44, v56, v60")
    for i in range(1, 4):
        for j in range(4):
            e("v_fmac_f32 v%d, v%d, v%d" % (40 + j, 56 + i, 64 + 4 * i + j))
        e("v_fmac_f32 v44, v%d, v%d" % (56 + i, 60 + i))
    g.nop(2)
    e("v_add_f32_dpp v44, v44, v44 row_ror:8 row_mask:0xf bank_mask:0xf")
    rows_reduce4(g, 40)
    bfly_rows(g, 44, 45, "add_f32")
    e("v_add_f32_dpp v40, v40, v40 row_ror:8 row_mask:0xf bank_mask:0xf")
    e("v_rcp_f32 v45, v44")
    g.nop(1)
    e("v_mul_f32 v40, v40, v45")
    e("v_cvt_pk_bf16_f32 v40, v40, v40")
    e("s_mov_b32 exec_lo, 0x000f000f")
    e("s_mov_b32 exec_hi, 0x000f000f")
    e("ds_write_b16 v19, v40 offset:%d" % M_AV)
    e("s_mov_b64 exec, -1")
    e("ds_write_b32 v%d, v21 offset:%d" % (V_MB, M_FLG + F_AV))
    g.stamp(11)
    e("s_cmp_ge_u32 s2, 32")
    e("s_cbranch_scc1 L_fin")
    e("v_and_b32 v26, 15, v1")
    e("v_lshl_add_u32 v26, v26, 2, v%d" % V_MB)
    e("v_lshlrev_b32 v24, 16, v24")
    lds_wait([rd_flag8(28, F_FR)] + ["ds_read_b32 v%d, v26 offset:%d" % (40 + wv, M_FR + wv * 64) for wv in range(8)],
             ck_flag8(28), "fr")
    g.stamp(12)
    e("v_add_f32 v40, v40, v41")
    e("v_add_f32 v42, v42, v43")
    e("v_add_f32 v44, v44, v45")
    e("v_add_f32 v46, v46, v47")
    e("v_add_f32 v40, v40, v42")
    e("v_add_f32 v44, v44, v46")
    e("v_add_f32 v40, v40, v44")
    e("v_add_f32 v40, v40, v24")
    e("v_cvt_pk_bf16_f32 v40, v40, v40")
    e("s_mov_b64 exec, 0xffff")
    e("global_store_short v23, v40, %s" % sp(S_OUT))
    ne = g.newlabel("noepoch")
    e("s_cmp_lg_u32 s2, 0")
    e("s_cbranch_scc1 %s" % ne)
    e("s_mov_b64 exec, 1")
    e("v_mov_b32 v26, %d" % WS_E)
    e("v_mov_b32 v27, s%d" % S_TAG)
    e("global_store_dword v26, v27, %s sc1" % sp(S_WS))
    g.lab(ne)
    e("s_mov_b64 exec, -1")
    g.stamp(13)
    g.lab("L_fin")
    NW = 10
    if stamps and o.get("dbgstamps"):
        sk2 = g.newlabel("nodbg")
        e("s_cmp_lg_u32 s2, 0")
        e("s_cbranch_scc1 %s" % sk2)
        e("s_cmp_lg_u32 s%d, %d" % (S_W, o.get("dbgwave", 8)))
        e("s_cbranch_scc1 %s" % sk2)
        e("s_waitcnt lgkmcnt(0)")
        e("s_mov_b64 exec, 1")
        e("v_mov_b32 v2, 0")
        for i in range(16):
            e("s_sub_u32 s%d, s%d, s40" % (S_T2, 40 + 2 * i))
            e("v_mov_b32 v4, s%d" % S_T2)
            e("global_store_dword v2, v4, %s offset:%d sc1" % (sp(S_DBG), 4 * i))
            e("s_nop 1")
        g.lab(sk2)
    elif stamps:
        e("s_waitcnt lgkmcnt(0)")
        e("s_mul_i32 s%d, s2, %d" % (S_T2, NW))
        e("s_add_u32 s%d, s%d, s%d" % (S_T2, S_T2, S_W))
        e("s_lshl_b32 s%d, s%d, 7" % (S_T2, S_T2))
        e("s_add_u32 s%d, s%d, %d" % (S_T2, S_T2, WS_STAMP))
        e("v_mov_b32 v2, s%d" % S_T2)
        e("s_mov_b64 exec, 1")
        for i in range(16):
            e("v_mov_b32 v4, s%d" % (40 + 2 * i))
            e("v_mov_b32 v5, s%d" % (41 + 2 * i))
            e("global_store_dwordx2 v2, v[4:5], %s offset:%d" % (sp(S_WS), 8 * i))
            e("s_nop 1")
    g.lab("L_end")
    e("s_endpgm")
    tail = [
        '.section .rodata,"a"',
        ".p2align 6",
        ".amdhsa_kernel %s" % K,
        "  .amdhsa_next_free_vgpr %d" % NV,
        "  .amdhsa_next_free_sgpr 102",
        "  .amdhsa_accum_offset %d" % NV,
        "  .amdhsa_group_segment_fixed_size 0",
        "  .amdhsa_kernarg_size 96",
        "  .amdhsa_user_sgpr_count 2",
        "  .amdhsa_user_sgpr_kernarg_segment_ptr 1",
        "  .amdhsa_system_sgpr_workgroup_id_x 1",
        ".end_amdhsa_kernel",
    ]
    return "\n".join(out + g.L + tail) + "\n"

if __name__ == "__main__":
    stamps = "--stamps" in sys.argv
    outp = [a for a in sys.argv[1:] if not a.startswith("--")]
    opts = {}
    for a in sys.argv[1:]:
        if a.startswith("--o:"):
            kv = a[4:].split("=")
            opts[kv[0]] = int(kv[1]) if len(kv) > 1 else 1
    txt = build(stamps, opts)
    open(outp[0], "w").write(txt)
    print("wrote", outp[0], len(txt.split("\n")), "lines")
```
